```python
import torch

def _softmax(x, axis=-1):
    return torch.softmax(x, dim=axis)
def _gelu(x):
    return torch.nn.functional.gelu(x, approximate="tanh")
def _silu(x):
    return torch.nn.functional.silu(x)
def _sigmoid(x):
    return torch.sigmoid(x)
def _layernorm(x, axis=-1, eps=1e-5):
    m = x.mean(dim=axis, keepdim=True)
    v = x.var(dim=axis, keepdim=True, unbiased=False)
    return (x - m) / torch.sqrt(v + eps)
def _scatter_add(tgt, idx, src, axis=0):
    return tgt.clone().index_add_(axis, idx, src)
def _segment_sum(src, seg, n):
    out = torch.zeros((n,) + src.shape[1:], dtype=src.dtype)
    return out.index_add_(0, seg, src)
def _pad(x, pw):
    flat = tuple(v for pair in reversed(pw) for v in pair)
    return torch.nn.functional.pad(x, flat)

kernel_name = 'standalone__fused_io_aware_attn__prompt'

def setup_inputs():

    _w = (lambda a: (lambda t: t.to(torch.bfloat16) if t.is_floating_point() else t)(torch.as_tensor(a)))
    B, H, S = 1, 16, 4096
    Dh = max(1, 448 // 16)
    return {
        "q": _w((lambda *s: torch.randn(*s, dtype=torch.bfloat16) * 0.8)(B, H, S, Dh)),
        "k": _w((lambda *s: torch.randn(*s, dtype=torch.bfloat16) * 0.8)(B, H, S, Dh)),
        "v": _w((lambda *s: torch.randn(*s, dtype=torch.bfloat16) * 0.05)(B, H, S, Dh)),
    }

def reference(q, k, v):
    scale = q.shape[-1] ** -0.5
    s = torch.einsum('bhqd,bhkd->bhqk', q, k) * scale
    p = _softmax(s, axis=-1)
    return torch.einsum('bhqk,bhkd->bhqd', p, v)
```

```python
import math, struct, sys

NAME = "standalone__fused_io_aware_attn__prompt"
HEAD_BYTES = 4096*56
STAGE_G = 256*56
SLOT = 32768
ONES = 131072
FLAG = ONES + 8192
LDS_TOTAL = FLAG + 256

def f32bits(x): return struct.unpack("<I", struct.pack("<f", x))[0]
CSCALE = f32bits(28**-0.5 * math.log2(math.e))

o = []
def e(s): o.append("    " + s)
def lab(s): o.append(s + ":")
def cm(s): o.append("    ; " + s)

vTID=0
vLANE=1; vM=2; vH=3; vT0=4; vT1=5; vT2=6; vT3=7
vKD=8
vVD=9
vK0=10; vK1=11; vV=12
vK0b=13; vK1b=14; vVb=15
vMASK=16; vIDX=17
vQ0=18; vQ1=19
vOO=20
vCA=21
vCB=22
Q=24
KB=40
VB=56
C=72
O=104
S=136
NV=200
def vr(b,n): return f"v[{b}:{b+n-1}]"
def Qf(t,i): return vr(Q+t*8+i*4,4)
def Kf(b,i): return vr(KB+b*8+i*4,4)
def Vf(b,t): return vr(VB+b*8+t*4,4)
def Sb(j,qt): return S+((j%2)*2+qt)*16

sQ=12; sK=16; sV=20; sO=24
sW=28; sG=29; sQG=30; sHEAD=31; sQB=32; sIT=33; sDG=34; sDL=35; sRS=36; sT=37; sT2=38; sNREC=39; sFB=40; sC=41; sW1792=42; sW2048=43

def qk(j,qt,i):
    d=Sb(j,qt)
    c = vr(C+qt*16,16) if i==0 else vr(d,16)
    return f"v_mfma_f32_32x32x16_bf16 {vr(d,16)}, {Kf(j%2,i)}, {Qf(qt,i)}, {c}"
def pv(j,qt,t):
    return f"v_smfmac_f32_32x32x32_bf16 {vr(O+qt*16,16)}, {Vf(j%2,t)}, {vr(Sb(j,qt)+8*t,8)}, v{vIDX}"
def ex(j,qt,r):
    x=Sb(j,qt)+r
    return f"v_exp_f32 v{x}, v{x}"
def rdK(buf,tile,i):
    return f"ds_read_b128 {Kf(buf,i)}, v{vK0 if i==0 else vK1} offset:{tile*2048}"
def rdV(buf,tile,t,a):
    return f"ds_read_b64_tr_b16 {vr(VB+buf*8+t*4+a*2,2)}, v{vV} offset:{tile*2048+t*1024+a*256}"
def dma(piece):
    isV = piece>=2; sec = piece&1
    add = (16384 if isV else 0) + (128 if sec else 0)
    a = f"s_add_u32 m0, s{sDL}, {add}"
    srd = sV if isV else sK
    off = " offset:896" if sec else ""
    b = f"buffer_load_dwordx4 v{vVD if isV else vKD}, s[{srd}:{srd+3}], s{sDG} offen{off} lds"
    return a,b

hdr = open("cdna_kernels/%s.s.ref"%NAME).read().split("; Override")[0]
o.append(hdr.rstrip())
o.append(f"; @launch grid=(256,1,1) block=(512,1,1) lds={LDS_TOTAL}")
o.append('.amdgcn_target "amdgcn-amd-amdhsa--gfx950"')
o.append(".text")
o.append(f".globl {NAME}_kernel")
o.append(".p2align 8")
o.append(f".type {NAME}_kernel,@function")
lab(f"{NAME}_kernel")
e("s_cmp_ge_u32 s2, 256")
e("s_cbranch_scc1 L_end")
e("s_load_dwordx8 s[4:11], s[0:1], 0")
e(f"v_lshrrev_b32 v{vT0}, 6, v0")
e(f"v_and_b32 v{vLANE}, 63, v0")
e(f"v_readfirstlane_b32 s{sW}, v{vT0}")
e(f"v_and_b32 v{vM}, 31, v0")
e(f"v_lshrrev_b32 v{vH}, 5, v{vLANE}")
cm("head / q block")
e(f"s_and_b32 s{sHEAD}, s2, 7")
e(f"s_lshl_b32 s{sHEAD}, s{sHEAD}, 1")
e(f"s_lshr_b32 s{sT}, s2, 7")
e(f"s_add_u32 s{sHEAD}, s{sHEAD}, s{sT}")
e(f"s_lshr_b32 s{sQB}, s2, 3")
e(f"s_and_b32 s{sQB}, s{sQB}, 15")
e(f"s_lshr_b32 s{sG}, s{sW}, 2")
e(f"s_and_b32 s{sQG}, s{sW}, 3")
e(f"s_mul_i32 s{sW1792}, s{sW}, 1792")
e(f"s_lshl_b32 s{sW2048}, s{sW}, 11")
e(f"s_mov_b32 s{sNREC}, {HEAD_BYTES}")
e(f"s_mov_b32 s{sFB}, 0")
e(f"s_mul_i32 s{sT}, s{sHEAD}, {HEAD_BYTES}")
e(f"s_mul_i32 s{sT2}, s{sQB}, {STAGE_G}")
e(f"s_add_u32 s{sT2}, s{sT2}, s{sT}")
cm("q-style offsets: m*56 + 16h ; m*56 + 32 + 8h")
e(f"v_mul_u32_u24 v{vT0}, 56, v{vM}")
e(f"v_lshl_add_u32 v{vQ0}, v{vH}, 4, v{vT0}")
e(f"v_lshl_add_u32 v{vQ1}, v{vH}, 3, v{vT0}")
e(f"v_mov_b32 v{vOO}, v{vQ1}")
e(f"v_add_u32 v{vQ1}, 32, v{vQ1}")
cm("DMA offsets: r = lane>>2, pos = lane&3")
e(f"v_lshrrev_b32 v{vT0}, 2, v{vLANE}")
e(f"v_mul_u32_u24 v{vT0}, 56, v{vT0}")
e(f"v_and_b32 v{vT1}, 3, v{vLANE}")
e(f"v_lshl_add_u32 v{vVD}, v{vT1}, 4, v{vT0}")
e(f"v_lshrrev_b32 v{vT2}, 4, v{vLANE}")
e(f"v_xor_b32 v{vT1}, v{vT1}, v{vT2}")
e(f"v_lshlrev_b32 v{vT1}, 4, v{vT1}")
e(f"v_min_u32 v{vT1}, 40, v{vT1}")
e(f"v_add_u32 v{vKD}, v{vT0}, v{vT1}")
e("s_waitcnt lgkmcnt(0)")
cm("SRDs")
e(f"s_add_u32 s{sQ}, s4, s{sT2}")
e(f"s_addc_u32 s{sQ+1}, s5, 0")
e(f"s_mov_b32 s{sQ+2}, {STAGE_G}")
e(f"s_mov_b32 s{sQ+3}, 0x20000")
e(f"s_add_u32 s{sK}, s6, s{sT}")
e(f"s_addc_u32 s{sK+1}, s7, 0")
e(f"s_mov_b32 s{sK+2}, s{sNREC}")
e(f"s_mov_b32 s{sK+3}, 0x20000")
e(f"s_add_u32 s{sV}, s8, s{sT}")
e(f"s_addc_u32 s{sV+1}, s9, 0")
e(f"s_mov_b32 s{sV+2}, s{sNREC}")
e(f"s_mov_b32 s{sV+3}, 0x20000")
e(f"s_add_u32 s{sO}, s10, s{sT2}")
e(f"s_addc_u32 s{sO+1}, s11, 0")
e(f"s_mov_b32 s{sO+2}, {STAGE_G}")
e(f"s_mov_b32 s{sO+3}, 0x20000")
cm("Q loads: local tile t <-> 32-row block (t ^ grp) of this wave's 64 rows")
e(f"s_lshl_b32 s{sT}, s{sQG}, 1")
e(f"s_add_u32 s{sT2}, s{sT}, s{sG}")
e(f"s_mul_i32 s{sC}, s{sT2}, 1792")
e(f"s_xor_b32 s{sT2}, s{sT2}, 1")
e(f"s_mul_i32 s{sT2}, s{sT2}, 1792")
e(f"buffer_load_dwordx4 {Qf(0,0)}, v{vQ0}, s[{sQ}:{sQ+3}], s{sC} offen")
e(f"buffer_load_dwordx4 {Qf(0,1)}, v{vQ1}, s[{sQ}:{sQ+3}], s{sC} offen")
e(f"buffer_load_dwordx4 {Qf(1,0)}, v{vQ0}, s[{sQ}:{sQ+3}], s{sT2} offen")
e(f"buffer_load_dwordx4 {Qf(1,1)}, v{vQ1}, s[{sQ}:{sQ+3}], s{sT2} offen")
e(f"v_add_u32 v{vOO}, s{sC}, v{vOO}")

lab("L_restart")
cm("prime the ring: stages 0, 1 and the K half of stage 2")
e(f"s_mov_b32 s{sDG}, s{sW1792}")
e(f"s_mov_b32 s{sDL}, s{sW2048}")
for st in range(3):
    for p in range(4 if st<2 else 2):
        a,b=dma(p); e(a); e("s_nop 0"); e(b)
    if st<2:
        e(f"s_add_u32 s{sDG}, s{sDG}, {STAGE_G}")
        e(f"s_add_u32 s{sDL}, s{sDL}, {SLOT}")
cm("LDS read address bases")
e(f"s_lshl_b32 s{sT}, s{sG}, 13")
e(f"v_bfe_u32 v{vT0}, v{vM}, 2, 2")
e(f"v_xor_b32 v{vT0}, v{vT0}, v{vH}")
e(f"v_lshlrev_b32 v{vT0}, 4, v{vT0}")
e(f"v_lshl_add_u32 v{vT0}, v{vM}, 6, v{vT0}")
e(f"v_add_u32 v{vK0b}, s{sT}, v{vT0}")
e(f"v_xor_b32 v{vK1b}, 32, v{vK0b}")
cm("V: (8h + r)*64 + g*32 + c*8")
e(f"v_bfe_u32 v{vT0}, v{vLANE}, 2, 2")
e(f"v_lshl_add_u32 v{vT0}, v{vH}, 3, v{vT0}")
e(f"v_lshlrev_b32 v{vT0}, 6, v{vT0}")
e(f"v_bfe_u32 v{vT1}, v{vLANE}, 4, 1")
e(f"v_and_b32 v{vT2}, 3, v{vLANE}")
e(f"v_lshl_add_u32 v{vT1}, v{vT1}, 2, v{vT2}")
e(f"v_lshl_add_u32 v{vT0}, v{vT1}, 3, v{vT0}")
e(f"s_add_u32 s{sT}, s{sT}, 16384")
e(f"v_mov_b32 v{vT2}, s{sT}")
e(f"v_mov_b32 v{vT3}, {ONES}")
e(f"v_cmp_eq_u32 vcc, 7, v{vT1}")
e("s_nop 1")
e(f"v_cndmask_b32 v{vT2}, v{vT2}, v{vT3}, vcc")
e(f"v_cndmask_b32 v{vMASK}, 1, 0, vcc")
e(f"v_add_u32 v{vVb}, v{vT0}, v{vT2}")
e(f"v_mov_b32 v{vK0}, v{vK0b}")
e(f"v_mov_b32 v{vK1}, v{vK1b}")
e(f"v_mov_b32 v{vV}, v{vVb}")
e(f"v_mov_b32 v{vIDX}, 0xdddddddd")
e(f"s_mov_b32 s{sRS}, 0")
cm("ones region + flag")
e(f"v_lshlrev_b32 v{vT0}, 4, v0")
e(f"v_add_u32 v{vT0}, {ONES}, v{vT0}")
for r in range(4): e(f"v_mov_b32 v{S+r}, 0x3f803f80")
e(f"ds_write_b128 v{vT0}, {vr(S,4)}")
e(f"v_mov_b32 v{vT1}, {FLAG}")
e(f"v_mov_b32 v{vT2}, 0")
e(f"ds_write_b32 v{vT1}, v{vT2}")
cm("combine addresses")
e(f"s_lshl_b32 s{sT}, s{sW}, 12")
e(f"v_lshl_add_u32 v{vCA}, v{vLANE}, 4, s{sT}")
e(f"v_xor_b32 v{vCB}, 16384, v{vCA}")
cm("zero accumulators and the operands of the first dummy PV")
for r in range(32): e(f"v_mov_b32 v{O+r}, 0")
for r in range(8): e(f"v_mov_b32 v{Sb(1,1)+8+r}, 0")
for r in range(4): e(f"v_mov_b32 v{VB+8+4+r}, 0")
e(f"s_cmp_lg_u32 s{sFB}, 0")
e("s_cbranch_scc1 L_skipq")
cm("scale Q by log2(e)/sqrt(28), round to bf16")
e(f"s_mov_b32 s{sC}, 0x{CSCALE:08x}")
e("s_waitcnt vmcnt(10)")
for r in range(16):
    x=Q+r
    e(f"v_lshlrev_b32 v{vT0}, 16, v{x}")
    e(f"v_and_b32 v{vT1}, 0xffff0000, v{x}")
    e(f"v_mul_f32 v{vT0}, s{sC}, v{vT0}")
    e(f"v_mul_f32 v{vT1}, s{sC}, v{vT1}")
    e(f"v_cvt_pk_bf16_f32 v{x}, v{vT0}, v{vT1}")
cm("upper half: first 4 slots of chunk 3 duplicate d 20..23 -> zero")
e(f"v_cmp_eq_u32 vcc, 1, v{vH}")
e("s_nop 1")
for t in range(2):
    for r in range(2):
        x=Q+t*8+4+r
        e(f"v_cndmask_b32 v{x}, v{x}, 0, vcc")
lab("L_skipq")
e("s_waitcnt vmcnt(6) lgkmcnt(0)")
e("s_barrier")
e(f"s_cmp_lg_u32 s{sFB}, 0")
e("s_cbranch_scc1 L_skipc")
cm("softmax shift: C = -(q . k0) for every row, from an A operand whose rows are all -k0")
e(f"v_lshlrev_b32 v{vT0}, 4, v{vH}")
e(f"ds_read_b128 {Kf(0,0)}, v{vT0}")
e(f"ds_read_b128 {Kf(0,1)}, v{vT0} offset:32")
e("s_waitcnt lgkmcnt(0)")
for r in range(8): e(f"v_xor_b32 v{KB+r}, 0x80008000, v{KB+r}")
e("s_nop 1")
for t in range(2):
    e(f"v_mfma_f32_32x32x16_bf16 {vr(C+t*16,16)}, {Kf(0,0)}, {Qf(t,0)}, 0")
for t in range(2):
    e(f"v_mfma_f32_32x32x16_bf16 {vr(C+t*16,16)}, {Kf(0,1)}, {Qf(t,1)}, {vr(C+t*16,16)}")
lab("L_skipc")
e(rdK(0,0,0)); e(rdK(0,0,1))
e(rdK(1,1,0)); e(rdK(1,1,1))
for t in range(2):
    for a in range(2): e(rdV(0,0,t,a))
e(f"s_mov_b32 s{sIT}, 16")
e("s_waitcnt lgkmcnt(6)")
e("s_nop 7")
e(qk(0,0,0)); e(qk(0,0,1)); e(qk(0,1,0)); e(qk(0,1,1))
e("s_nop 15")

o.append(".p2align 6")
lab("L_loop")
for jj in range(4):
    j=jj+4
    cm(f"---- key tile {jj}")
    ktile = (jj+2)%4; vtile=(jj+1)%4
    da,db = dma([2,3,0,1][jj])
    pre = []
    if jj==2:
        pre += ["s_waitcnt vmcnt(4)", "s_barrier",
                f"s_add_u32 s{sRS}, s{sRS}, {SLOT}", f"s_and_b32 s{sRS}, s{sRS}, 0x1ffff",
                f"v_add_u32 v{vK0}, s{sRS}, v{vK0b}", f"v_add_u32 v{vK1}, s{sRS}, v{vK1b}",
                f"s_add_u32 s{sDL}, s{sDL}, {SLOT}", f"s_and_b32 s{sDL}, s{sDL}, 0x1ffff",
                f"s_add_u32 s{sDG}, s{sDG}, {STAGE_G}", f"s_cmp_lt_u32 s{sDG}, s{sNREC}",
                f"s_cselect_b32 s{sK+2}, s{sNREC}, 0", f"s_cselect_b32 s{sV+2}, s{sNREC}, 0"]
    if jj==3:
        pre += [f"v_mad_u32_u24 v{vV}, v{vMASK}, s{sRS}, v{vVb}"]
    X=lambda r: ex(j,0,r)
    seq=[X(0),X(1),pv(j-1,1,1),X(2),X(3),"s_waitcnt lgkmcnt(0)",X(4),X(5),qk(j+1,0,0)]+pre+[X(6),rdK(j%2,ktile,0),X(7),rdK(j%2,ktile,1),X(8),X(9),
         pv(j,0,0),X(10),rdV((j+1)%2,vtile,0,0),X(11),rdV((j+1)%2,vtile,0,1),X(12),X(13),qk(j+1,0,1),X(14),X(15)]
    Y=lambda r: ex(j,1,r)
    seq+=[Y(0),Y(1),pv(j,0,1),Y(2),rdV((j+1)%2,vtile,1,0),Y(3),rdV((j+1)%2,vtile,1,1),Y(4),Y(5),qk(j+1,1,0),Y(6),da,Y(7),db,Y(8),Y(9),
          pv(j,1,0),Y(10),Y(11),Y(12),Y(13),qk(j+1,1,1)]
    if jj==3:
        seq+=[f"s_sub_u32 s{sIT}, s{sIT}, 1", Y(14), f"s_cmp_lg_u32 s{sIT}, 0", Y(15), "s_cbranch_scc1 L_loop"]
    else:
        seq+=[Y(14),Y(15)]
    for s in seq: e(s)
e("s_nop 1")
e(pv(3,1,1))
e("s_waitcnt vmcnt(0) lgkmcnt(0)")
e("s_barrier")
e("s_nop 15")
cm("hand local tile 1 to the partner wave, finish local tile 0")
for i in range(4): e(f"ds_write_b128 v{vCA}, {vr(O+16+4*i,4)} offset:{i*1024}")
e("s_waitcnt lgkmcnt(0)")
e("s_barrier")
for i in range(4): e(f"ds_read_b128 {vr(S+4*i,4)}, v{vCB} offset:{i*1024}")
e("s_waitcnt lgkmcnt(0)")
for r in range(16): e(f"v_add_f32 v{O+r}, v{O+r}, v{S+r}")
e(f"v_mov_b32 v{vT0}, v{O+12}")
e(f"v_mov_b32 v{vT1}, v{O+12}")
e("s_nop 1")
e(f"v_permlane32_swap_b32 v{vT0}, v{vT1}")
e("s_nop 1")
e(f"v_rcp_f32 v{vT2}, v{vT1}")
cm("range check of the shifted sums: l < 2^100 and every accumulator finite")
e(f"v_mov_b32 v{vT3}, v{vT1}")
for r in range(16): e(f"v_fma_f32 v{vT3}, v{O+r}, 0, v{vT3}")
for r in range(16): e(f"v_mul_f32 v{O+r}, v{O+r}, v{vT2}")
for r in range(8): e(f"v_cvt_pk_bf16_f32 v{S+r}, v{O+2*r}, v{O+2*r+1}")
for i in range(3): e(f"buffer_store_dwordx2 {vr(S+2*i,2)}, v{vOO}, s[{sO}:{sO+3}], 0 offen offset:{16*i}")
e("s_mov_b32 exec_hi, 0")
e(f"buffer_store_dwordx2 {vr(S+6,2)}, v{vOO}, s[{sO}:{sO+3}], 0 offen offset:48")
e("s_mov_b32 exec_hi, -1")
e(f"s_cmp_lg_u32 s{sFB}, 0")
e("s_cbranch_scc1 L_end")
e(f"v_mov_b32 v{vT0}, 0x{f32bits(2.0**100):08x}")
e(f"v_cmp_nlt_f32 vcc, v{vT3}, v{vT0}")
e(f"v_mov_b32 v{vT1}, {FLAG}")
e(f"v_mov_b32 v{vT2}, 1")
e("s_cmp_eq_u64 vcc, 0")
e("s_cbranch_scc1 L_noflag")
e(f"ds_write_b32 v{vT1}, v{vT2}")
lab("L_noflag")
e("s_waitcnt lgkmcnt(0)")
e("s_barrier")
e(f"ds_read_b32 v{vT2}, v{vT1}")
e("s_waitcnt lgkmcnt(0)")
e(f"v_readfirstlane_b32 s{sT}, v{vT2}")
e("s_nop 3")
e(f"s_cmp_eq_u32 s{sT}, 0")
e("s_cbranch_scc1 L_end")
cm("---- fallback: exact row maxima over all keys, then redo the block with them")
e("s_waitcnt vmcnt(0)")
e("s_barrier")
e(f"s_mov_b32 s{sFB}, 1")
e(f"s_mov_b32 s{sK+2}, s{sNREC}")
e(f"s_mov_b32 s{sV+2}, s{sNREC}")
e(f"s_mov_b32 s{sT}, 0")
e(f"v_mov_b32 v{vT2}, 0xff800000")
e(f"v_mov_b32 v{vT3}, 0xff800000")
lab("L_max")
e(f"buffer_load_dwordx4 {Kf(0,0)}, v{vQ0}, s[{sK}:{sK+3}], s{sT} offen")
e(f"buffer_load_dwordx4 {Kf(0,1)}, v{vQ1}, s[{sK}:{sK+3}], s{sT} offen")
e("s_waitcnt vmcnt(0)")
for t in range(2): e(f"v_mfma_f32_32x32x16_bf16 {vr(S+t*16,16)}, {Kf(0,0)}, {Qf(t,0)}, 0")
for t in range(2): e(f"v_mfma_f32_32x32x16_bf16 {vr(S+t*16,16)}, {Kf(0,1)}, {Qf(t,1)}, {vr(S+t*16,16)}")
e("s_nop 15")
for t in range(2):
    for r in range(0,16,2):
        e(f"v_max3_f32 v{vT2+t}, v{S+t*16+r}, v{S+t*16+r+1}, v{vT2+t}")
e(f"s_add_u32 s{sT}, s{sT}, 1792")
e(f"s_cmp_lt_u32 s{sT}, s{sNREC}")
e("s_cbranch_scc1 L_max")
for t in range(2):
    e(f"v_mov_b32 v{vT0}, v{vT2+t}")
    e(f"v_mov_b32 v{vT1}, v{vT2+t}")
    e("s_nop 1")
    e(f"v_permlane32_swap_b32 v{vT0}, v{vT1}")
    e("s_nop 1")
    e(f"v_max_f32 v{vT0}, v{vT0}, v{vT1}")
    for r in range(16): e(f"v_sub_f32 v{C+t*16+r}, 0, v{vT0}")
e("s_branch L_restart")
lab("L_end")
e("s_endpgm")
o.append('.section .rodata,"a"')
o.append(".p2align 6")
o.append(f""".amdhsa_kernel {NAME}_kernel
  .amdhsa_next_free_vgpr {NV}
  .amdhsa_next_free_sgpr 64
  .amdhsa_accum_offset {NV}
  .amdhsa_group_segment_fixed_size 0
  .amdhsa_kernarg_size 48
  .amdhsa_user_sgpr_count 2
  .amdhsa_user_sgpr_kernarg_segment_ptr 1
  .amdhsa_system_sgpr_workgroup_id_x 1
.end_amdhsa_kernel""")
out = sys.argv[1] if len(sys.argv)>1 else f"cdna_kernels/{NAME}.s"
open(out,"w").write("\n".join(o)+"\n")
```

```python
import math, struct, sys

NAME = "standalone__fused_io_aware_attn__prompt"
HEAD_BYTES = 4096*56
STAGE_G = 256*56
SLOT = 32768
ONES = 131072
FLAG = ONES + 8192
LDS_TOTAL = FLAG + 256

def f32bits(x): return struct.unpack("<I", struct.pack("<f", x))[0]
CSCALE = f32bits(28**-0.5 * math.log2(math.e))

o = []
DBG = len(sys.argv)>2 and sys.argv[2]=="dbg"
NST=[0]
def stamp():
    if DBG:
        i=NST[0]; NST[0]+=1
        e(f"s_memtime s[{64+2*i}:{65+2*i}]")
def e(s): o.append("    " + s)
def lab(s): o.append(s + ":")
def cm(s): o.append("    ; " + s)

vTID=0
vLANE=1; vM=2; vH=3; vT0=4; vT1=5; vT2=6; vT3=7
vKD=8
vVD=9
vK0=10; vK1=11; vV=12
vK0b=13; vK1b=14; vVb=15
vMASK=16; vIDX=17
vQ0=18; vQ1=19
vOO=20
vCA=21
vCB=22
Q=24
KB=40
VB=56
C=72
O=104
S=136
NV=200
def vr(b,n): return f"v[{b}:{b+n-1}]"
def Qf(t,i): return vr(Q+t*8+i*4,4)
def Kf(b,i): return vr(KB+b*8+i*4,4)
def Vf(b,t): return vr(VB+b*8+t*4,4)
def Sb(j,qt): return S+((j%2)*2+qt)*16

sQ=12; sK=16; sV=20; sO=24
sW=28; sG=29; sQG=30; sHEAD=31; sQB=32; sIT=33; sDG=34; sDL=35; sRS=36; sT=37; sT2=38; sNREC=39; sFB=40; sC=41; sW1792=42; sW2048=43

def qk(j,qt,i):
    d=Sb(j,qt)
    c = vr(C+qt*16,16) if i==0 else vr(d,16)
    return f"v_mfma_f32_32x32x16_bf16 {vr(d,16)}, {Kf(j%2,i)}, {Qf(qt,i)}, {c}"
def pv(j,qt,t):
    return f"v_smfmac_f32_32x32x32_bf16 {vr(O+qt*16,16)}, {Vf(j%2,t)}, {vr(Sb(j,qt)+8*t,8)}, v{vIDX}"
def ex(j,qt,r):
    x=Sb(j,qt)+r
    return f"v_exp_f32 v{x}, v{x}"
def rdK(buf,tile,i):
    return f"ds_read_b128 {Kf(buf,i)}, v{vK0 if i==0 else vK1} offset:{tile*2048}"
def rdV(buf,tile,t,a):
    return f"ds_read_b64_tr_b16 {vr(VB+buf*8+t*4+a*2,2)}, v{vV} offset:{tile*2048+t*1024+a*256}"
def dma(piece):
    isV = piece>=2; sec = piece&1
    add = (16384 if isV else 0) + (128 if sec else 0)
    a = f"s_add_u32 m0, s{sDL}, {add}"
    srd = sV if isV else sK
    off = " offset:896" if sec else ""
    b = f"buffer_load_dwordx4 v{vVD if isV else vKD}, s[{srd}:{srd+3}], s{sDG} offen{off} lds"
    return a,b

hdr = open("cdna_kernels/%s.s.ref"%NAME).read().split("; Override")[0]
o.append(hdr.rstrip())
o.append(f"; @launch grid=(256,1,1) block=(512,1,1) lds={LDS_TOTAL}")
o.append('.amdgcn_target "amdgcn-amd-amdhsa--gfx950"')
o.append(".text")
o.append(f".globl {NAME}_kernel")
o.append(".p2align 8")
o.append(f".type {NAME}_kernel,@function")
lab(f"{NAME}_kernel")
e("s_cmp_ge_u32 s2, 256")
e("s_cbranch_scc1 L_end")
stamp()
if DBG: e("s_memrealtime s[90:91]")
e("s_load_dwordx8 s[4:11], s[0:1], 0")
if DBG: e("s_load_dwordx2 s[44:45], s[0:1], 32")
e(f"v_lshrrev_b32 v{vT0}, 6, v0")
e(f"v_and_b32 v{vLANE}, 63, v0")
e(f"v_readfirstlane_b32 s{sW}, v{vT0}")
e(f"v_and_b32 v{vM}, 31, v0")
e(f"v_lshrrev_b32 v{vH}, 5, v{vLANE}")
cm("head / q block")
e(f"s_and_b32 s{sHEAD}, s2, 7")
e(f"s_lshl_b32 s{sHEAD}, s{sHEAD}, 1")
e(f"s_lshr_b32 s{sT}, s2, 7")
e(f"s_add_u32 s{sHEAD}, s{sHEAD}, s{sT}")
e(f"s_lshr_b32 s{sQB}, s2, 3")
e(f"s_and_b32 s{sQB}, s{sQB}, 15")
e(f"s_lshr_b32 s{sG}, s{sW}, 2")
e(f"s_and_b32 s{sQG}, s{sW}, 3")
e(f"s_mul_i32 s{sW1792}, s{sW}, 1792")
e(f"s_lshl_b32 s{sW2048}, s{sW}, 11")
e(f"s_mov_b32 s{sNREC}, {HEAD_BYTES}")
e(f"s_mov_b32 s{sFB}, 0")
e(f"s_mul_i32 s{sT}, s{sHEAD}, {HEAD_BYTES}")
e(f"s_mul_i32 s{sT2}, s{sQB}, {STAGE_G}")
e(f"s_add_u32 s{sT2}, s{sT2}, s{sT}")
cm("q-style offsets: m*56 + 16h ; m*56 + 32 + 8h")
e(f"v_mul_u32_u24 v{vT0}, 56, v{vM}")
e(f"v_lshl_add_u32 v{vQ0}, v{vH}, 4, v{vT0}")
e(f"v_lshl_add_u32 v{vQ1}, v{vH}, 3, v{vT0}")
e(f"v_mov_b32 v{vOO}, v{vQ1}")
e(f"v_add_u32 v{vQ1}, 32, v{vQ1}")
cm("DMA offsets: r = lane>>2, pos = lane&3")
e(f"v_lshrrev_b32 v{vT0}, 2, v{vLANE}")
e(f"v_mul_u32_u24 v{vT0}, 56, v{vT0}")
e(f"v_and_b32 v{vT1}, 3, v{vLANE}")
e(f"v_lshl_add_u32 v{vVD}, v{vT1}, 4, v{vT0}")
e(f"v_lshrrev_b32 v{vT2}, 4, v{vLANE}")
e(f"v_xor_b32 v{vT1}, v{vT1}, v{vT2}")
e(f"v_lshlrev_b32 v{vT1}, 4, v{vT1}")
e(f"v_min_u32 v{vT1}, 40, v{vT1}")
e(f"v_add_u32 v{vKD}, v{vT0}, v{vT1}")
e("s_waitcnt lgkmcnt(0)")
stamp()
cm("SRDs")
e(f"s_add_u32 s{sQ}, s4, s{sT2}")
e(f"s_addc_u32 s{sQ+1}, s5, 0")
e(f"s_mov_b32 s{sQ+2}, {STAGE_G}")
e(f"s_mov_b32 s{sQ+3}, 0x20000")
e(f"s_add_u32 s{sK}, s6, s{sT}")
e(f"s_addc_u32 s{sK+1}, s7, 0")
e(f"s_mov_b32 s{sK+2}, s{sNREC}")
e(f"s_mov_b32 s{sK+3}, 0x20000")
e(f"s_add_u32 s{sV}, s8, s{sT}")
e(f"s_addc_u32 s{sV+1}, s9, 0")
e(f"s_mov_b32 s{sV+2}, s{sNREC}")
e(f"s_mov_b32 s{sV+3}, 0x20000")
e(f"s_add_u32 s{sO}, s10, s{sT2}")
e(f"s_addc_u32 s{sO+1}, s11, 0")
e(f"s_mov_b32 s{sO+2}, {STAGE_G}")
e(f"s_mov_b32 s{sO+3}, 0x20000")
cm("Q loads: local tile t <-> 32-row block (t ^ grp) of this wave's 64 rows")
e(f"s_lshl_b32 s{sT}, s{sQG}, 1")
e(f"s_add_u32 s{sT2}, s{sT}, s{sG}")
e(f"s_mul_i32 s{sC}, s{sT2}, 1792")
e(f"s_xor_b32 s{sT2}, s{sT2}, 1")
e(f"s_mul_i32 s{sT2}, s{sT2}, 1792")
e(f"buffer_load_dwordx4 {Qf(0,0)}, v{vQ0}, s[{sQ}:{sQ+3}], s{sC} offen")
e(f"buffer_load_dwordx4 {Qf(0,1)}, v{vQ1}, s[{sQ}:{sQ+3}], s{sC} offen")
e(f"buffer_load_dwordx4 {Qf(1,0)}, v{vQ0}, s[{sQ}:{sQ+3}], s{sT2} offen")
e(f"buffer_load_dwordx4 {Qf(1,1)}, v{vQ1}, s[{sQ}:{sQ+3}], s{sT2} offen")
e(f"v_add_u32 v{vOO}, s{sC}, v{vOO}")

lab("L_restart")
cm("prime the ring: stages 0, 1 and the K half of stage 2")
e(f"s_mov_b32 s{sDG}, s{sW1792}")
e(f"s_mov_b32 s{sDL}, s{sW2048}")
for st in range(3):
    for p in range(4 if st<2 else 2):
        a,b=dma(p); e(a); e("s_nop 0"); e(b)
    if st<2:
        e(f"s_add_u32 s{sDG}, s{sDG}, {STAGE_G}")
        e(f"s_add_u32 s{sDL}, s{sDL}, {SLOT}")
cm("LDS read address bases")
e(f"s_lshl_b32 s{sT}, s{sG}, 13")
e(f"v_bfe_u32 v{vT0}, v{vM}, 2, 2")
e(f"v_xor_b32 v{vT0}, v{vT0}, v{vH}")
e(f"v_lshlrev_b32 v{vT0}, 4, v{vT0}")
e(f"v_lshl_add_u32 v{vT0}, v{vM}, 6, v{vT0}")
e(f"v_add_u32 v{vK0b}, s{sT}, v{vT0}")
e(f"v_xor_b32 v{vK1b}, 32, v{vK0b}")
cm("V: (8h + r)*64 + g*32 + c*8")
e(f"v_bfe_u32 v{vT0}, v{vLANE}, 2, 2")
e(f"v_lshl_add_u32 v{vT0}, v{vH}, 3, v{vT0}")
e(f"v_lshlrev_b32 v{vT0}, 6, v{vT0}")
e(f"v_bfe_u32 v{vT1}, v{vLANE}, 4, 1")
e(f"v_and_b32 v{vT2}, 3, v{vLANE}")
e(f"v_lshl_add_u32 v{vT1}, v{vT1}, 2, v{vT2}")
e(f"v_lshl_add_u32 v{vT0}, v{vT1}, 3, v{vT0}")
e(f"s_add_u32 s{sT}, s{sT}, 16384")
e(f"v_mov_b32 v{vT2}, s{sT}")
e(f"v_mov_b32 v{vT3}, {ONES}")
e(f"v_cmp_eq_u32 vcc, 7, v{vT1}")
e("s_nop 1")
e(f"v_cndmask_b32 v{vT2}, v{vT2}, v{vT3}, vcc")
e(f"v_cndmask_b32 v{vMASK}, 1, 0, vcc")
e(f"v_add_u32 v{vVb}, v{vT0}, v{vT2}")
e(f"v_mov_b32 v{vK0}, v{vK0b}")
e(f"v_mov_b32 v{vK1}, v{vK1b}")
e(f"v_mov_b32 v{vV}, v{vVb}")
e(f"v_mov_b32 v{vIDX}, 0xdddddddd")
e(f"s_mov_b32 s{sRS}, 0")
cm("ones region + flag")
e(f"v_lshlrev_b32 v{vT0}, 4, v0")
e(f"v_add_u32 v{vT0}, {ONES}, v{vT0}")
for r in range(4): e(f"v_mov_b32 v{S+r}, 0x3f803f80")
e(f"ds_write_b128 v{vT0}, {vr(S,4)}")
e(f"v_mov_b32 v{vT1}, {FLAG}")
e(f"v_mov_b32 v{vT2}, 0")
e(f"ds_write_b32 v{vT1}, v{vT2}")
cm("combine addresses")
e(f"s_lshl_b32 s{sT}, s{sW}, 12")
e(f"v_lshl_add_u32 v{vCA}, v{vLANE}, 4, s{sT}")
e(f"v_xor_b32 v{vCB}, 16384, v{vCA}")
cm("zero accumulators and the operands of the first dummy PV")
for r in range(32): e(f"v_mov_b32 v{O+r}, 0")
for r in range(8): e(f"v_mov_b32 v{Sb(1,1)+8+r}, 0")
for r in range(4): e(f"v_mov_b32 v{VB+8+4+r}, 0")
e(f"s_cmp_lg_u32 s{sFB}, 0")
e("s_cbranch_scc1 L_skipq")
cm("scale Q by log2(e)/sqrt(28), round to bf16")
e(f"s_mov_b32 s{sC}, 0x{CSCALE:08x}")
e("s_waitcnt vmcnt(10)")
stamp()
for r in range(16):
    x=Q+r
    e(f"v_lshlrev_b32 v{vT0}, 16, v{x}")
    e(f"v_and_b32 v{vT1}, 0xffff0000, v{x}")
    e(f"v_mul_f32 v{vT0}, s{sC}, v{vT0}")
    e(f"v_mul_f32 v{vT1}, s{sC}, v{vT1}")
    e(f"v_cvt_pk_bf16_f32 v{x}, v{vT0}, v{vT1}")
cm("upper half: first 4 slots of chunk 3 duplicate d 20..23 -> zero")
e(f"v_cmp_eq_u32 vcc, 1, v{vH}")
e("s_nop 1")
for t in range(2):
    for r in range(2):
        x=Q+t*8+4+r
        e(f"v_cndmask_b32 v{x}, v{x}, 0, vcc")
lab("L_skipq")
e("s_waitcnt vmcnt(6) lgkmcnt(0)")
stamp()
e("s_barrier")
stamp()
if DBG: e("s_waitcnt lgkmcnt(0)")
e(f"s_cmp_lg_u32 s{sFB}, 0")
e("s_cbranch_scc1 L_skipc")
cm("softmax shift: C = -(q . k0) for every row, from an A operand whose rows are all -k0")
e(f"v_lshlrev_b32 v{vT0}, 4, v{vH}")
e(f"ds_read_b128 {Kf(0,0)}, v{vT0}")
e(f"ds_read_b128 {Kf(0,1)}, v{vT0} offset:32")
e("s_waitcnt lgkmcnt(0)")
for r in range(8): e(f"v_xor_b32 v{KB+r}, 0x80008000, v{KB+r}")
e("s_nop 1")
for t in range(2):
    e(f"v_mfma_f32_32x32x16_bf16 {vr(C+t*16,16)}, {Kf(0,0)}, {Qf(t,0)}, 0")
for t in range(2):
    e(f"v_mfma_f32_32x32x16_bf16 {vr(C+t*16,16)}, {Kf(0,1)}, {Qf(t,1)}, {vr(C+t*16,16)}")
lab("L_skipc")
e(rdK(0,0,0)); e(rdK(0,0,1))
e(rdK(1,1,0)); e(rdK(1,1,1))
for t in range(2):
    for a in range(2): e(rdV(0,0,t,a))
e(f"s_mov_b32 s{sIT}, 16")
e("s_waitcnt lgkmcnt(6)")
e("s_nop 7")
e(qk(0,0,0)); e(qk(0,0,1)); e(qk(0,1,0)); e(qk(0,1,1))
e("s_nop 15")

stamp()
if DBG: e("s_waitcnt lgkmcnt(0)")
o.append(".p2align 6")
lab("L_loop")
for jj in range(4):
    j=jj+4
    cm(f"---- key tile {jj}")
    ktile = (jj+2)%4; vtile=(jj+1)%4
    da,db = dma([2,3,0,1][jj])
    pre = []
    if jj==2:
        pre += ["s_waitcnt vmcnt(4)", "s_barrier",
                f"s_add_u32 s{sRS}, s{sRS}, {SLOT}", f"s_and_b32 s{sRS}, s{sRS}, 0x1ffff",
                f"v_add_u32 v{vK0}, s{sRS}, v{vK0b}", f"v_add_u32 v{vK1}, s{sRS}, v{vK1b}",
                f"s_add_u32 s{sDL}, s{sDL}, {SLOT}", f"s_and_b32 s{sDL}, s{sDL}, 0x1ffff",
                f"s_add_u32 s{sDG}, s{sDG}, {STAGE_G}", f"s_cmp_lt_u32 s{sDG}, s{sNREC}",
                f"s_cselect_b32 s{sK+2}, s{sNREC}, 0", f"s_cselect_b32 s{sV+2}, s{sNREC}, 0"]
    if jj==3:
        pre += [f"v_mad_u32_u24 v{vV}, v{vMASK}, s{sRS}, v{vVb}"]
    X=lambda r: ex(j,0,r)
    seq=[X(0),X(1),pv(j-1,1,1),X(2),X(3),"s_waitcnt lgkmcnt(0)",X(4),X(5),qk(j+1,0,0)]+pre+[X(6),rdK(j%2,ktile,0),X(7),rdK(j%2,ktile,1),X(8),X(9),
         pv(j,0,0),X(10),rdV((j+1)%2,vtile,0,0),X(11),rdV((j+1)%2,vtile,0,1),X(12),X(13),qk(j+1,0,1),X(14),X(15)]
    Y=lambda r: ex(j,1,r)
    seq+=[Y(0),Y(1),pv(j,0,1),Y(2),rdV((j+1)%2,vtile,1,0),Y(3),rdV((j+1)%2,vtile,1,1),Y(4),Y(5),qk(j+1,1,0),Y(6),da,Y(7),db,Y(8),Y(9),
          pv(j,1,0),Y(10),Y(11),Y(12),Y(13),qk(j+1,1,1)]
    if jj==3:
        seq+=[f"s_sub_u32 s{sIT}, s{sIT}, 1", Y(14), f"s_cmp_lg_u32 s{sIT}, 0", Y(15), "s_cbranch_scc1 L_loop"]
    else:
        seq+=[Y(14),Y(15)]
    for s in seq: e(s)
e("s_nop 1")
e(pv(3,1,1))
stamp()
e("s_waitcnt vmcnt(0) lgkmcnt(0)")
e("s_barrier")
e("s_nop 15")
cm("hand local tile 1 to the partner wave, finish local tile 0")
for i in range(4): e(f"ds_write_b128 v{vCA}, {vr(O+16+4*i,4)} offset:{i*1024}")
e("s_waitcnt lgkmcnt(0)")
e("s_barrier")
for i in range(4): e(f"ds_read_b128 {vr(S+4*i,4)}, v{vCB} offset:{i*1024}")
e("s_waitcnt lgkmcnt(0)")
for r in range(16): e(f"v_add_f32 v{O+r}, v{O+r}, v{S+r}")
e(f"v_mov_b32 v{vT0}, v{O+12}")
e(f"v_mov_b32 v{vT1}, v{O+12}")
e("s_nop 1")
e(f"v_permlane32_swap_b32 v{vT0}, v{vT1}")
e("s_nop 1")
e(f"v_rcp_f32 v{vT2}, v{vT1}")
cm("range check of the shifted sums: l < 2^100 and every accumulator finite")
e(f"v_mov_b32 v{vT3}, v{vT1}")
for r in range(16): e(f"v_fma_f32 v{vT3}, v{O+r}, 0, v{vT3}")
for r in range(16): e(f"v_mul_f32 v{O+r}, v{O+r}, v{vT2}")
for r in range(8): e(f"v_cvt_pk_bf16_f32 v{S+r}, v{O+2*r}, v{O+2*r+1}")
for i in range(3): e(f"buffer_store_dwordx2 {vr(S+2*i,2)}, v{vOO}, s[{sO}:{sO+3}], 0 offen offset:{16*i}")
e("s_mov_b32 exec_hi, 0")
e(f"buffer_store_dwordx2 {vr(S+6,2)}, v{vOO}, s[{sO}:{sO+3}], 0 offen offset:48")
e("s_mov_b32 exec_hi, -1")
e(f"s_cmp_lg_u32 s{sFB}, 0")
e("s_cbranch_scc1 L_end")
e(f"v_mov_b32 v{vT0}, 0x{f32bits(2.0**100):08x}")
e(f"v_cmp_nlt_f32 vcc, v{vT3}, v{vT0}")
e(f"v_mov_b32 v{vT1}, {FLAG}")
e(f"v_mov_b32 v{vT2}, 1")
e("s_cmp_eq_u64 vcc, 0")
e("s_cbranch_scc1 L_noflag")
e(f"ds_write_b32 v{vT1}, v{vT2}")
lab("L_noflag")
e("s_waitcnt lgkmcnt(0)")
e("s_barrier")
e(f"ds_read_b32 v{vT2}, v{vT1}")
e("s_waitcnt lgkmcnt(0)")
e(f"v_readfirstlane_b32 s{sT}, v{vT2}")
e("s_nop 3")
if DBG:
    e("s_waitcnt vmcnt(0)")
    stamp()
    e("s_memrealtime s[92:93]")
    e("s_waitcnt lgkmcnt(0)")
    e("s_and_b32 s46, s2, 0x7f")
    e(f"s_and_b32 s47, s{sW}, 3")
    e("s_or_b32 s46, s46, s47")
    e("s_cmp_lg_u32 s46, 0")
    e("s_cbranch_scc1 L_nodbg")
    e("s_lshr_b32 s46, s2, 7")
    e(f"s_lshl_b32 s46, s46, 1")
    e(f"s_add_u32 s46, s46, s{sG}")
    e(f"s_lshl_b32 s46, s46, 5")
    e(f"v_mov_b32 v{vT0}, s46")
    for i in range(1,NST[0]):
        e(f"s_sub_u32 s47, s{64+2*i}, s64")
        e(f"v_mov_b32 v{vT1}, s47")
        e(f"global_store_dword v{vT0}, v{vT1}, s[44:45] offset:{4*(i-1)}")
    e("s_sub_u32 s47, s92, s90")
    e(f"v_mov_b32 v{vT1}, s47")
    e(f"global_store_dword v{vT0}, v{vT1}, s[44:45] offset:28")
    lab("L_nodbg")
e(f"s_cmp_eq_u32 s{sT}, 0")
e("s_cbranch_scc1 L_end")
cm("---- fallback: exact row maxima over all keys, then redo the block with them")
e("s_waitcnt vmcnt(0)")
e("s_barrier")
e(f"s_mov_b32 s{sFB}, 1")
e(f"s_mov_b32 s{sK+2}, s{sNREC}")
e(f"s_mov_b32 s{sV+2}, s{sNREC}")
e(f"s_mov_b32 s{sT}, 0")
e(f"v_mov_b32 v{vT2}, 0xff800000")
e(f"v_mov_b32 v{vT3}, 0xff800000")
lab("L_max")
e(f"buffer_load_dwordx4 {Kf(0,0)}, v{vQ0}, s[{sK}:{sK+3}], s{sT} offen")
e(f"buffer_load_dwordx4 {Kf(0,1)}, v{vQ1}, s[{sK}:{sK+3}], s{sT} offen")
e("s_waitcnt vmcnt(0)")
for t in range(2): e(f"v_mfma_f32_32x32x16_bf16 {vr(S+t*16,16)}, {Kf(0,0)}, {Qf(t,0)}, 0")
for t in range(2): e(f"v_mfma_f32_32x32x16_bf16 {vr(S+t*16,16)}, {Kf(0,1)}, {Qf(t,1)}, {vr(S+t*16,16)}")
e("s_nop 15")
for t in range(2):
    for r in range(0,16,2):
        e(f"v_max3_f32 v{vT2+t}, v{S+t*16+r}, v{S+t*16+r+1}, v{vT2+t}")
e(f"s_add_u32 s{sT}, s{sT}, 1792")
e(f"s_cmp_lt_u32 s{sT}, s{sNREC}")
e("s_cbranch_scc1 L_max")
for t in range(2):
    e(f"v_mov_b32 v{vT0}, v{vT2+t}")
    e(f"v_mov_b32 v{vT1}, v{vT2+t}")
    e("s_nop 1")
    e(f"v_permlane32_swap_b32 v{vT0}, v{vT1}")
    e("s_nop 1")
    e(f"v_max_f32 v{vT0}, v{vT0}, v{vT1}")
    for r in range(16): e(f"v_sub_f32 v{C+t*16+r}, 0, v{vT0}")
e("s_branch L_restart")
lab("L_end")
e("s_endpgm")
o.append('.section .rodata,"a"')
o.append(".p2align 6")
o.append(f""".amdhsa_kernel {NAME}_kernel
  .amdhsa_next_free_vgpr {NV}
  .amdhsa_next_free_sgpr {96 if DBG else 64}
  .amdhsa_accum_offset {NV}
  .amdhsa_group_segment_fixed_size 0
  .amdhsa_kernarg_size 48
  .amdhsa_user_sgpr_count 2
  .amdhsa_user_sgpr_kernarg_segment_ptr 1
  .amdhsa_system_sgpr_workgroup_id_x 1
.end_amdhsa_kernel""")
out = sys.argv[1] if len(sys.argv)>1 else f"cdna_kernels/{NAME}.s"
open(out,"w").write("\n".join(o)+"\n")
```

```python
import math, struct, sys

NAME = "standalone__fused_io_aware_attn__prompt"
out_path = sys.argv[1]
OPT = dict(x.split("=") for x in sys.argv[2:])
DBG = OPT.get("dbg","0")=="1"
ITS = OPT.get("its","0")=="1"
PRIO = OPT.get("prio","3@53,2@39,1@49,0@51")
TPRIO = OPT.get("tprio","0@3,2@5,1@8,0@12")
KSL=[int(c,16) for c in OPT.get("ksl","5678")]
VSL=[int(c,16) for c in OPT.get("vsl","abcd")]
DPOS=[(int(x[0]),int(x[1],16)) for x in OPT.get("dpos","39,3e,09,0e,12,19,1e").split(",")]
KILL=OPT.get("kill","")
H0F=OPT.get("h0f","0")=="1"
LATE=OPT.get("late","0")=="1"

HEAD_BYTES = 4096*56
QBLK = 256*56
STAGE_G = 512*56
SLOT = 2*STAGE_G
TILE = 1792
GRP = 4*TILE
CONST = 2*SLOT
QX = CONST + 8192
FLAG = QX + 16384
LDS_TOTAL = FLAG + 256

def f32bits(x): return struct.unpack("<I", struct.pack("<f", x))[0]
CSCALE = f32bits(28**-0.5 * math.log2(math.e))

o = []
def e(s): o.append("    " + s)
def lab(s): o.append(s + ":")
def cm(s): o.append("    ; " + s)
NST=[0]
ST0=68
SS=OPT.get("ss","p")
def stamp(wait=False, tag=None):
    if DBG and (tag is None or tag in SS):
        i=NST[0]; NST[0]+=1
        e(f"s_memtime s[{ST0+2*i}:{ST0+1+2*i}]")
        if wait: e("s_waitcnt lgkmcnt(0)")

vLANE=1; vM=2; vH=3; vT0=4; vT1=5; vT2=6; vT3=7
vDM=8
vQA=9
vKa=10; vKb=11; vV=12
vKa0=13; vKb0=14; vV0=15
vMK=16; vMV=17; vIDX=18
vOW=19
vXA=20
vXR=21
vCW=24
vCR=27
Q=32
KB=64
VB=80
O=96
S=160
NV=224
def vr(b,n): return f"v[{b}:{b+n-1}]"
def Qf(t,i): return vr(Q+t*8+i*4,4)
def Kf(b,i): return vr(KB+b*8+i*4,4)
def Vf(b,t): return vr(VB+b*8+t*4,4)

sQ=12; sK=16; sD=20; sO=24
sW=28; sKQ=29; sQG=30; sHEAD=31; sQB=32; sIT=33; sDG=34; sDM=35; sRS=36; sT=37; sT2=38; sFB=40
sC=42
sREG=46; sHB=47; sHM=48
sOWN=50; sOWNL=51
sK0=52
sLREG=39

def qk(j,qt,i):
    d=S+qt*16
    c = "0" if i==0 else vr(d,16)
    return f"v_mfma_f32_32x32x16_bf16 {vr(d,16)}, {Kf(j%2,i)}, {Qf(qt,i)}, {c}"
def pv(j,qt,t):
    return f"v_smfmac_f32_32x32x32_bf16 {vr(O+qt*16,16)}, {Vf(j%2,t)}, {vr(S+qt*16+8*t,8)}, v{vIDX}"
def ex(qt,r):
    x=S+qt*16+r
    return f"v_exp_f32 v{x}, v{x}"
def rdK(buf,tile):
    b=KB+buf*8; off=tile*TILE
    return [f"ds_read_b64 {vr(b,2)}, v{vKa} offset:{off}", f"ds_read_b64 {vr(b+2,2)}, v{vKa} offset:{off+8}",
            f"ds_read_b64 {vr(b+4,2)}, v{vKa} offset:{off+16}", f"ds_read_b64 {vr(b+6,2)}, v{vKb} offset:{off}"]
def rdV(buf,tile):
    return [f"ds_read_b64_tr_b16 {vr(VB+buf*8+t*4+a*2,2)}, v{vV} offset:{tile*TILE+t*896+a*224}" for t in range(2) for a in range(2)]
def dma(p):
    off=(p%4)*1024
    return f"buffer_load_dwordx4 v{vDM}, s[{sD}:{sD+3}], s{sDG} offen" + (f" offset:{off}" if off else "") + " lds"

hdr = open("cdna_kernels/%s.s.ref"%NAME).read().split("; Override")[0]
o.append(hdr.rstrip())
o.append(f"; @launch grid=(256,1,1) block=(512,1,1) lds={LDS_TOTAL}")
o.append('.amdgcn_target "amdgcn-amd-amdhsa--gfx950"')
o.append(".text")
o.append(f".globl {NAME}_kernel")
o.append(".p2align 8")
o.append(f".type {NAME}_kernel,@function")
lab(f"{NAME}_kernel")
stamp()
e("s_load_dwordx8 s[4:11], s[0:1], 0")
e("s_cmp_ge_u32 s2, 256")
e("s_cbranch_scc1 L_end")
e("s_setprio 3")
if DBG: e("s_memrealtime s[96:97]")
if DBG: e("s_load_dwordx2 s[44:45], s[0:1], 40")
e(f"v_lshrrev_b32 v{vT0}, 6, v0")
e(f"v_and_b32 v{vLANE}, 63, v0")
e(f"v_readfirstlane_b32 s{sW}, v{vT0}")
e(f"v_lshlrev_b32 v{vDM}, 4, v{vLANE}")
if OPT.get("cpf","0")!="0":
    cm("pull this kernel's code into L2 (one line per lane)")
    e("s_getpc_b64 s[42:43]")
    e(f"v_lshlrev_b32 v{vT1}, 7, v{vLANE}")
    e(f"v_min_u32 v{vT1}, {int(OPT['cpf'])}, v{vT1}")
    e(f"global_load_dword v28, v{vT1}, s[42:43]")
cm("head = 2*(wg&7) + (wg>>7), q block = (wg>>3)&15")
e(f"s_and_b32 s{sHEAD}, s2, 7")
e(f"s_lshl_b32 s{sHEAD}, s{sHEAD}, 1")
e(f"s_lshr_b32 s{sT}, s2, 7")
e(f"s_add_u32 s{sHEAD}, s{sHEAD}, s{sT}")
e(f"s_lshr_b32 s{sQB}, s2, 3")
e(f"s_and_b32 s{sQB}, s{sQB}, 15")
e(f"s_lshr_b32 s{sKQ}, s{sW}, 1")
e(f"s_and_b32 s{sQG}, s{sW}, 1")
e(f"s_lshl_b32 s{sQG}, s{sQG}, 2")
e(f"s_add_u32 s{sOWN}, s{sQG}, s{sKQ}")
e(f"s_lshl_b32 s{sOWNL}, s{sOWN}, 11")
e(f"s_add_u32 s{sOWNL}, s{sOWNL}, {QX}")
e(f"s_mul_i32 s{sOWN}, s{sOWN}, {TILE}")
e(f"s_mov_b32 m0, s{sOWNL}")
e(f"s_mul_i32 s{sT}, s{sHEAD}, {HEAD_BYTES}")
e(f"s_mul_i32 s{sT2}, s{sQB}, {QBLK}")
e(f"s_add_u32 s{sT2}, s{sT2}, s{sT}")
e(f"s_and_b32 s{sREG}, s{sW}, 3")
e(f"s_mul_i32 s{sREG}, s{sREG}, {GRP}")
e(f"s_mul_i32 s{sLREG}, s{sW}, {GRP}")
e(f"s_mov_b32 s{sHB}, {HEAD_BYTES}")
e(f"s_mov_b32 s{sFB}, 0")
e(f"s_mov_b32 s{sQ+2}, {QBLK}")
e(f"s_mov_b32 s{sQ+3}, 0x20000")
e(f"s_mov_b32 s{sK+2}, s{sHB}")
e(f"s_mov_b32 s{sK+3}, 0x20000")
e(f"s_mov_b32 s{sD+2}, s{sHB}")
e(f"s_mov_b32 s{sD+3}, 0x20000")
e(f"s_mov_b32 s{sO+2}, {QBLK}")
e(f"s_mov_b32 s{sO+3}, 0x20000")
e("s_waitcnt lgkmcnt(0)")
stamp()
def qload():
    e(f"s_add_u32 s{sQ}, s4, s{sT2}")
    e(f"s_addc_u32 s{sQ+1}, s5, 0")
    e(f"buffer_load_dwordx4 v{vDM}, s[{sQ}:{sQ+3}], s{sOWN} offen lds")
    e("s_mov_b32 exec_hi, 0x1ffff")
    e(f"buffer_load_dwordx4 v{vDM}, s[{sQ}:{sQ+3}], s{sOWN} offen offset:1024 lds")
    e("s_mov_b32 exec_hi, -1")
def k0load():
    e(f"s_add_u32 s{sK}, s6, s{sT}")
    e(f"s_addc_u32 s{sK+1}, s7, 0")
    e(f"s_load_dwordx16 s[{sK0}:{sK0+15}], s[{sK}:{sK+1}], 0")
def dsrd():
    e(f"s_cmp_lt_u32 s{sW}, 4")
    e(f"s_cselect_b32 s{sD}, s6, s8")
    e(f"s_cselect_b32 s{sD+1}, s7, s9")
    e(f"s_add_u32 s{sD}, s{sD}, s{sT}")
    e(f"s_addc_u32 s{sD+1}, s{sD+1}, 0")
if not H0F:
    qload(); k0load(); dsrd()
    lab("L_restart")
    cm("stage 0 of the K/V ring, leading pieces first")
    e("s_setprio 2")
    e(f"s_mov_b32 m0, s{sLREG}")
    e(f"s_mov_b32 s{sDG}, s{sREG}")
    e(dma(0)); e(dma(1))
else:
    dsrd()
    lab("L_restart")
    e(f"s_mov_b32 m0, s{sLREG}")
    e(f"s_mov_b32 s{sDG}, s{sREG}")
    e(dma(0)); e(dma(1))
    e(f"s_cmp_lg_u32 s{sFB}, 0")
    e("s_cbranch_scc1 L_noq")
    e("s_setprio 2")
    e(f"s_mov_b32 m0, s{sOWNL}")
    qload(); k0load()
    e(f"s_mov_b32 m0, s{sLREG}")
    lab("L_noq")
e("s_setprio 1")
e(dma(2)); e(dma(3))
e("s_setprio 0")
stamp(tag="p")
e(f"v_and_b32 v{vM}, 31, v0")
e(f"v_lshrrev_b32 v{vH}, 5, v{vLANE}")
e(f"v_mul_u32_u24 v{vT0}, 56, v{vM}")
e(f"v_lshl_add_u32 v{vQA}, v{vH}, 5, v{vT0}")
e(f"v_lshl_add_u32 v{vOW}, v{vH}, 3, v{vT0}")
e(f"v_add_u32 v{vOW}, s{sOWNL}, v{vOW}")
e(f"v_add_u32 v{vXA}, s{sOWNL}, v{vDM}")
e(f"v_mov_b64 {vr(VB,2)}, 0")
e(f"v_mov_b64 {vr(VB+2,2)}, 0")
cm("LDS read addresses")
e(f"s_mul_i32 s{sC}, s{sKQ}, {GRP}")
e(f"v_cmp_eq_u32 s[{sHM}:{sHM+1}], 1, v{vH}")
e(f"v_add_u32 v{vKa0}, s{sC}, v{vQA}")
e(f"v_add_u32 v{vT0}, 24, v{vKa0}")
e(f"v_mov_b32 v{vT1}, {CONST+8}")
e(f"v_cndmask_b32 v{vKb0}, v{vT0}, v{vT1}, s[{sHM}:{sHM+1}]")
e(f"v_xor_b32 v{vMK}, 1, v{vH}")
cm("V: (8h + r)*56 + (4g + c)*8 ; lanes with 4g+c == 7 read the constant column")
e(f"v_bfe_u32 v{vT0}, v{vLANE}, 2, 2")
e(f"v_lshl_add_u32 v{vT0}, v{vH}, 3, v{vT0}")
e(f"v_mul_u32_u24 v{vT0}, 56, v{vT0}")
e(f"v_bfe_u32 v{vT1}, v{vLANE}, 4, 1")
e(f"v_and_b32 v{vT2}, 3, v{vLANE}")
e(f"v_lshl_add_u32 v{vT1}, v{vT1}, 2, v{vT2}")
e(f"v_lshl_add_u32 v{vT0}, v{vT1}, 3, v{vT0}")
e(f"s_add_u32 s{sC}, s{sC}, {STAGE_G}")
e(f"v_cmp_eq_u32 vcc, 7, v{vT1}")
e(f"v_add_u32 v{vT0}, s{sC}, v{vT0}")
e(f"v_mul_u32_u24 v{vT2}, 448, v{vH}")
e(f"v_add_u32 v{vT2}, {CONST+224}, v{vT2}")
e(f"v_cndmask_b32 v{vV0}, v{vT0}, v{vT2}, vcc")
e(f"v_cndmask_b32 v{vMV}, 1, 0, vcc")
e(f"v_mov_b32 v{vKa}, v{vKa0}")
e(f"v_mov_b32 v{vKb}, v{vKb0}")
e(f"v_mov_b32 v{vV}, v{vV0}")
e(f"v_mov_b32 v{vIDX}, 0xdddddddd")
e(f"s_mov_b32 s{sRS}, 0")
cm("constant region {1,0,0,0 | 1,1,1,0} and the flag word")
e(f"v_lshlrev_b32 v{vT0}, 4, v0")
e(f"v_add_u32 v{vT0}, {CONST}, v{vT0}")
e(f"v_mov_b32 v{S}, 0x3f80")
e(f"v_mov_b32 v{S+1}, 0")
e(f"v_mov_b32 v{S+2}, 0x3f803f80")
e(f"v_mov_b32 v{S+3}, 0x3f80")
e(f"ds_write_b128 v{vT0}, {vr(S,4)}")
e(f"v_mov_b32 v{vT1}, {FLAG}")
e(f"ds_write_b32 v{vT1}, v{S+1}")
cm("local query tile t is tile 4*qg + ((kq+1+t)&3); local tile 3 is this wave's own")
for t in range(3):
    e(f"s_add_u32 s{sC}, s{sKQ}, {t+1}")
    e(f"s_and_b32 s{sC}, s{sC}, 3")
    e(f"s_add_u32 s{sC}, s{sC}, s{sQG}")
    e(f"s_lshl_b32 s{sC+1}, s{sC}, 11")
    e(f"s_add_u32 s{sC+1}, s{sC+1}, {QX}")
    e(f"v_add_u32 v{vXR+t}, s{sC+1}, v{vDM}")
    e(f"s_mul_i32 s{sC}, s{sC}, 12288")
    e(f"s_add_u32 s{sC}, s{sC}, {t*4096}")
    e(f"v_add_u32 v{vCW+t}, s{sC}, v{vDM}")
e(f"s_add_u32 s{sC}, s{sQG}, s{sKQ}")
e(f"s_mul_i32 s{sC}, s{sC}, 12288")
e(f"v_add_u32 v{vCR}, s{sC}, v{vDM}")
cm("zero accumulators")
for t in range(4): e(f"v_mfma_f32_32x32x16_bf16 {vr(O+16*t,16)}, {vr(VB,4)}, {vr(VB,4)}, 0")
e(f"s_mov_b32 s{sC}, 0x{CSCALE:08x}")
e(f"s_mov_b32 s{sC+1}, s{sC}")
e("s_mov_b64 vcc, -1")
e(f"s_mov_b32 s{sIT}, 0")
e(f"s_cmp_lg_u32 s{sFB}, 0")
e("s_cbranch_scc1 L_skipq")
e(f"s_add_u32 s{sO}, s10, s{sT2}")
e(f"s_addc_u32 s{sO+1}, s11, 0")
e(f"v_add_u32 v{vT3}, s{sOWNL}, v{vQA}")
cm("key row 0 in fragment order")
stamp(tag="p")
e("s_waitcnt lgkmcnt(0)")
stamp(tag="p")
for r in range(8): e(f"v_mov_b32 v{KB+r}, s{sK0+r}")
e(f"s_mov_b32 exec_lo, 0")
for r in range(8): e(f"v_mov_b32 v{KB+r}, {'s%d'%(sK0+8+r) if r<6 else '0'}")
e(f"s_mov_b32 exec_lo, -1")
e(f"s_waitcnt vmcnt({2 if H0F else 4})")
stamp()
Q3=Q+24
for i in range(4): e(f"ds_read_b64 {vr(Q3+2*i,2)}, v{vT3} offset:{8*i}")
cm("scale own Q tile by log2(e)/sqrt(28), round to bf16; shift of each row = its score against key 0")
for i in range(4):
    e(f"s_waitcnt lgkmcnt({0 if DBG else 3-i})")
    for r in (2*i,2*i+1):
        x=Q3+r; t=S+8+2*r
        e(f"v_lshlrev_b32 v{t}, 16, v{x}")
        e(f"v_and_b32 v{t+1}, 0xffff0000, v{x}")
    for r in (2*i,2*i+1):
        t=S+8+2*r
        e(f"v_pk_mul_f32 {vr(t,2)}, {vr(t,2)}, s[{sC}:{sC+1}]")
    for r in (2*i,2*i+1):
        t=S+8+2*r
        e(f"v_cvt_pk_bf16_f32 v{Q3+r}, v{t}, v{t+1}")
    for r in (2*i,2*i+1):
        e(f"v_dot2_f32_bf16 v{vT2}, v{Q3+r}, v{KB+r}, {'0' if r==0 else 'v%d'%vT2}")
e(f"ds_write_b128 v{vXA}, {Qf(3,0)}")
e(f"v_cndmask_b32 v{Q3+7}, v{Q3+7}, 0, s[{sHM}:{sHM+1}]")
e("s_nop 0")
e(f"v_permlane32_swap_b32 v{vT1}, v{vT2}")
e("s_nop 1")
e(f"v_add_f32 v{vT3}, v{vT2}, v{vT1}")
e(f"v_cvt_pk_bf16_f32 v{vT0}, -v{vT3}, 0")
e(f"v_cndmask_b32 v{Q3+6}, v{Q3+6}, v{vT0}, s[{sHM}:{sHM+1}]")
lab("L_wq")
e(f"ds_write_b128 v{vXA}, {Qf(3,1)} offset:1024")
e(f"s_add_u32 m0, s{sLREG}, 4096")
e(f"s_add_u32 s{sDG}, s{sREG}, 4096")
e("s_waitcnt vmcnt(2) lgkmcnt(0)")
stamp()
e("s_barrier")
stamp(True)
rk=rdK(0,0)
e(f"ds_read_b128 {Qf(0,0)}, v{vXR}")
e(rk[0]); e(rk[1])
e(f"ds_read_b128 {Qf(0,1)}, v{vXR} offset:1024")
e(rk[2]); e(rk[3])
e(f"ds_read_b128 {Qf(1,0)}, v{vXR+1}")
e(f"ds_read_b128 {Qf(1,1)}, v{vXR+1} offset:1024")
e(f"ds_read_b128 {Qf(2,0)}, v{vXR+2}")
e(f"ds_read_b128 {Qf(2,1)}, v{vXR+2} offset:1024")
for x in rdV(0,0): e(x)
e("s_waitcnt lgkmcnt(11)")
e(qk(0,0,0))
e("s_waitcnt lgkmcnt(8)")
e(qk(0,0,1))
if not LATE: e(dma(4))
e("s_waitcnt lgkmcnt(6)")
e(qk(0,1,0))
if not LATE: e(dma(5))
e(qk(0,1,1))
def nextstage():
    e(f"s_add_u32 s{sDG}, s{sREG}, {STAGE_G}")
    e(f"s_add_u32 s{sDM}, s{sLREG}, {SLOT}")
    e(f"s_mov_b32 m0, s{sDM}")
if not LATE:
    e(dma(6)); nextstage()
else: e("s_nop 5")
if ITS:
    e("s_mov_b64 s[62:63], 1")
    e("v_mov_b32 v31, 0")
e("s_nop 3")
stamp(True)

def parse_prio(s):
    d={}
    for it in s.split(","):
        if it:
            l,p=it.split("@"); d[int(p)]=int(l)
    return d
prio_at=parse_prio(PRIO)
BSL=int(OPT.get("bsl","4"))
assert BSL<=KSL[0]
DPRE=OPT.get("dpre","0")=="1"
BPRE=OPT.get("bpre","0")=="1"
def mfmas(j):
    mf=[]
    for qt in range(4):
        prev = (j,qt-1) if qt>0 else (j-1,3)
        nx = (j,qt+2) if qt<2 else (j+1,qt-2)
        mf+=[pv(prev[0],prev[1],1), qk(nx[0],nx[1],0), pv(j,qt,0), qk(nx[0],nx[1],1)]
    return mf
exps=[ex(qt,r) for qt in range(4) for r in range(16)]
body=[]
ndma_before=lambda tile,slot: sum(1 for (t,s_) in DPOS[2:] if (t,s_)<(tile,slot))
skipn=[0]
for jj in range(4):
    j=jj+4
    mf=mfmas(j)
    sc=[[] for _ in range(16)]; mem=[[] for _ in range(16)]; va=[[] for _ in range(16)]
    free=lambda sl: (2 if sl%2==0 else 1)-len([x for x in sc[sl] if not x.endswith(":")])
    def put(lo,hi,x):
        for sl in range(lo,hi+1):
            if free(sl)>0: sc[sl].append(x); return sl
        sc[hi].append(x); return hi
    for x,sl in zip(rdK((j+1)%2,(jj+1)%4),KSL): mem[sl].append(x)
    for x,sl in zip(rdV((j+1)%2,(jj+1)%4),VSL): mem[sl].append(x)
    sc[0].append("s_waitcnt lgkmcnt(0)")
    allr=sorted([(x,0,i) for i,x in enumerate(KSL)]+[(x,1,i) for i,x in enumerate(VSL)])
    def after(idx,at):
        pos=allr.index((KSL[idx],0,idx))
        return sum(1 for r in allr[pos+1:] if r[0]<at)
    assert KSL[1]<8 and KSL[3]<10
    if KSL[3]>=6:
        sc[8].append(f"s_waitcnt lgkmcnt({after(1,8)})")
        sc[10].append(f"s_waitcnt lgkmcnt({after(3,10)})")
    else:
        sc[8].append(f"s_waitcnt lgkmcnt({after(3,8)})")
    if jj in (0,1):
        sc[BSL]+= [f"s_cbranch_vccnz L_first{jj}", f"L_first{jj}_ret:"]
    if jj==3:
        sc[BSL-2]+= ["s_cbranch_scc1 L_tail"]
        if BPRE: va[BSL-1]+= ["s_waitcnt vmcnt(0)", "s_barrier"]
        else: sc[BSL]+= ["s_waitcnt vmcnt(0)", "s_barrier"]
    for sl in range(16):
        if jj*16+sl in prio_at: sc[sl].append(f"s_setprio {prio_at[jj*16+sl]}")
    for p,(t,sl) in enumerate(DPOS):
        if t!=jj: continue
        if DPRE: va[sl].append(dma(p))
        else: mem[sl]=[dma(p)]+mem[sl]
    for p,(t,sl) in enumerate(DPOS):
        if t!=jj: continue
        prevsl = DPOS[p-1][1]+1 if (p>0 and DPOS[p-1][0]==jj) else 0
        if p==4:
            q_=put(prevsl,sl-1,f"s_add_u32 m0, s{sDM}, 4096"); put(q_,sl-1,f"s_add_u32 s{sDG}, s{sDG}, 4096")
    if jj==2:
        p=put(1,15,f"s_xor_b32 s{sRS}, s{sRS}, {SLOT}")
        p=put(p,15,f"s_add_u32 s{sDG}, s{sDG}, {STAGE_G-4096}")
        p=put(p,15,f"s_sub_u32 s{sDM}, s{sLREG}, s{sRS}")
        p=put(p,15,f"s_add_u32 s{sDM}, s{sDM}, {SLOT}")
        p=put(p,15,f"s_mov_b32 m0, s{sDM}")
        p=put(p,15,f"s_add_u32 s{sIT}, s{sIT}, 1")
        p=put(p,15,f"s_cmp_lt_u32 s{sIT}, 7")
        p=put(p,15,f"s_cselect_b32 s{sD+2}, s{sHB}, 0")
        va[KSL[3]+2].append(f"v_add_u32 v{vKa}, s{sRS}, v{vKa0}"); va[KSL[3]+4].append(f"v_mad_u32_u24 v{vKb}, v{vMK}, s{sRS}, v{vKb0}")
    if jj==3:
        va[1].append(f"v_mad_u32_u24 v{vV}, v{vMV}, s{sRS}, v{vV0}")
        put(0,BSL-3,f"s_cmp_eq_u32 s{sIT}, 8")
    if ITS:
        sc[5].append("s_memtime s[60:61]")
        va[13]+= ["v_mov_b32 v30, s60", "v_cndmask_b32 v31, v31, v30, s[62:63]"]
        sc[15].append("s_lshl_b64 s[62:63], s[62:63], 1")
    seq=[f";---- key tile {jj}"]+exps[0:2]
    for sl in range(16):
        seq+=[mf[sl]]+sc[sl]+mem[sl]+exps[2+4*sl:6+4*sl]+va[sl]
    body+=seq
head=body[:4]; body=body[4:]+head+["s_branch L_loop"]
for s_ in head[1:3]: e(s_)
if "d" in KILL: body=[x for x in body if not x.startswith("buffer_load")]
if "b" in KILL: body=[x for x in body if not x.startswith("s_barrier")]
if "l" in KILL: body=[x for x in body if not x.startswith("ds_read")]
o.append(".p2align 6")
lab("L_loop")
for s_ in body:
    if s_.endswith(":"): lab(s_[:-1])
    else: e(s_)
lab("L_first0")
cm("first pass only: pieces 2,3 of stage 0 must have landed; start on stage 1")
assert ndma_before(0,BSL)==0
if LATE:
    e(dma(4)); e(dma(5)); e(dma(6)); nextstage()
stamp(tag="f")
e("s_waitcnt vmcnt(3)")
stamp(tag="f")
e("s_barrier")
stamp(tag="f")
e(dma(0)); e(dma(1))
stamp(tag="f")
e("s_branch L_first0_ret")
lab("L_first1")
stamp(tag="f")
e(f"s_waitcnt vmcnt({2+ndma_before(1,BSL)})")
stamp(tag="f")
e("s_barrier")
e("s_mov_b64 vcc, 0")
e("s_branch L_first1_ret")

lab("L_tail")
cm("---- rest of the last key tile; finished query tiles go to their owners")
j=7
mf=mfmas(j)
tp=parse_prio(TPRIO)
W=lambda t,i: f"ds_write_b128 v{vCW+t}, {vr(O+16*t+4*i,4)} offset:{i*1024}"
seq=[]
wr={8:[W(0,0),W(0,1)],10:[W(0,2),W(0,3)],12:[W(1,0),W(1,1)],14:[W(1,2),W(1,3)]}
for sl in range(BSL-2,16):
    if sl>BSL-2 and not (sl>=9 and sl%2==1): seq.append(mf[sl])
    if sl==BSL: seq+=["s_waitcnt vmcnt(0)","s_barrier"]
    if sl in tp: seq.append(f"s_setprio {tp[sl]}")
    seq+=wr.get(sl,[])
    seq+=exps[2+4*sl:6+4*sl]
seq+=[W(2,0),W(2,1),pv(j,3,1),W(2,2),W(2,3)]
for s_ in seq: e(s_)
stamp()
e("s_waitcnt lgkmcnt(0)")
stamp(tag="p")
e("s_barrier")
stamp(True,tag="p")
O3=O+48
order=[3,7,11,0,4,8,1,5,9,2,6,10]
for i in order: e(f"ds_read_b128 {vr(S+4*i,4)}, v{vCR} offset:{i*1024}")
def add4(i):
    r=(i%4)*4
    return [f"v_pk_add_f32 {vr(O3+r,2)}, {vr(O3+r,2)}, {vr(S+4*i,2)}", f"v_pk_add_f32 {vr(O3+r+2,2)}, {vr(O3+r+2,2)}, {vr(S+4*i+2,2)}"]
for n,i in enumerate(order[:3]):
    e(f"s_waitcnt lgkmcnt({11-n})")
    for x in add4(i): e(x)
e(f"v_mov_b32 v{vT0}, v{O3+12}")
e(f"v_mov_b32 v{vT2}, v{O3+12}")
e("s_waitcnt lgkmcnt(8)")
a=add4(order[3]); e(a[0])
e(f"v_permlane32_swap_b32 v{vT0}, v{vT2}")
e(a[1])
e("s_waitcnt lgkmcnt(6)")
e(f"v_rcp_f32 v{vT0}, v{vT2}")
for x in add4(order[4])+add4(order[5]): e(x)
P=S+48
def fin(i):
    for r in (4*i,4*i+2): e(f"v_pk_mul_f32 {vr(S+r,2)}, {vr(O3+r,2)}, {vr(vT0,2)} op_sel_hi:[1,0]")
    for r in (2*i,2*i+1): e(f"v_cvt_pk_bf16_f32 v{P+r}, v{S+2*r}, v{S+2*r+1}")
fin(3); fin(0)
e("s_waitcnt lgkmcnt(3)")
for i in order[6:9]:
    for x in add4(i): e(x)
fin(1)
e("s_waitcnt lgkmcnt(0)")
for i in (3,0,1): e(f"ds_write_b64 v{vOW}, {vr(P+2*i,2)} offset:{16*i}")
for i in order[9:12]:
    for x in add4(i): e(x)
fin(2)
e(f"ds_write_b64 v{vOW}, {vr(P+4,2)} offset:32")
e(f"ds_read_b128 {vr(P+8,4)}, v{vXA}")
e(f"ds_read_b128 {vr(P+12,4)}, v{vXA} offset:1024")
cm("range check of the shifted sums: 2^-30 < l < 2^100 and every accumulator finite, else redo with true maxima")
e(f"v_mov_b32 v{vT3}, 0")
e(f"v_mov_b32 v{vT1}, v{vT2}")
for r in range(0,16,2): e(f"v_pk_fma_f32 {vr(vT2,2)}, {vr(O3+r,2)}, 0, {vr(vT2,2)}")
e("s_waitcnt lgkmcnt(1)")
e(f"buffer_store_dwordx4 {vr(P+8,4)}, v{vDM}, s[{sO}:{sO+3}], s{sOWN} offen")
e("s_mov_b32 exec_hi, 0xffff")
e("s_waitcnt lgkmcnt(0)")
e(f"buffer_store_dwordx4 {vr(P+12,4)}, v{vDM}, s[{sO}:{sO+3}], s{sOWN} offen offset:1024")
e("s_mov_b32 exec_hi, -1")
stamp(tag="p")
e(f"s_cmp_lg_u32 s{sFB}, 0")
e("s_cbranch_scc1 L_end")
e(f"v_add_f32 v{vT3}, v{vT2}, v{vT3}")
e(f"v_mov_b32 v{vT0}, 0x{f32bits(2.0**100):08x}")
e(f"v_cmp_nlt_f32 vcc, v{vT3}, v{vT0}")
e(f"v_mov_b32 v{vT0}, 0x{f32bits(2.0**-30):08x}")
e(f"v_cmp_ngt_f32 s[{sC}:{sC+1}], v{vT1}, v{vT0}")
e(f"v_mov_b32 v{vT1}, {FLAG}")
e(f"v_mov_b32 v{vT2}, 1")
e(f"s_or_b64 vcc, vcc, s[{sC}:{sC+1}]")
e("s_cbranch_scc0 L_noflag")
e(f"ds_write_b32 v{vT1}, v{vT2}")
lab("L_noflag")
e("s_waitcnt lgkmcnt(0)")
e("s_barrier")
e(f"ds_read_b32 v{vT2}, v{vT1}")
e("s_waitcnt lgkmcnt(0)")
e(f"v_readfirstlane_b32 s{sT}, v{vT2}")
e("s_nop 3")
if DBG:
    e("s_waitcnt vmcnt(0)")
    stamp()
    e("s_memrealtime s[98:99]")
    e("s_waitcnt lgkmcnt(0)")
    e("s_lshl_b32 s52, s2, 3")
    e(f"s_add_u32 s52, s52, s{sW}")
    e(f"s_lshl_b32 s52, s52, 6")
    e(f"v_mov_b32 v{vT0}, s52")
    for i in range(1,NST[0]):
        e(f"s_sub_u32 s53, s{ST0+2*i}, s{ST0}")
        e(f"v_mov_b32 v{vT1}, s53")
        e(f"global_store_dword v{vT0}, v{vT1}, s[44:45] offset:{4*(i-1)}")
    if ITS:
        e(f"v_subrev_u32 v31, s{ST0}, v31")
        e(f"s_lshl_b32 s52, s52, 2")
        e(f"s_add_u32 s52, s52, 0x40000")
        e(f"v_lshl_add_u32 v30, v{vLANE}, 2, s52")
        e(f"global_store_dword v30, v31, s[44:45]")
    e(f"v_mov_b32 v{vT1}, s96")
    e(f"global_store_dword v{vT0}, v{vT1}, s[44:45] offset:56")
    e(f"v_mov_b32 v{vT1}, s98")
    e(f"global_store_dword v{vT0}, v{vT1}, s[44:45] offset:60")
e(f"s_cmp_eq_u32 s{sT}, 0")
e("s_cbranch_scc1 L_end")
cm("---- fallback: exact row maxima over all keys, then redo the block with them")
e("s_waitcnt vmcnt(0)")
e("s_barrier")
e(f"s_mov_b32 s{sFB}, 1")
e(f"s_mov_b32 s{sD+2}, s{sHB}")
e(f"s_mov_b32 s{sT}, 0")
vX0=S+32
e(f"v_mov_b32 v{vX0}, 0xff800000")
lab("L_max")
e(f"buffer_load_dwordx4 {Kf(0,0)}, v{vQA}, s[{sK}:{sK+3}], s{sT} offen")
e(f"buffer_load_dwordx4 {Kf(0,1)}, v{vQA}, s[{sK}:{sK+3}], s{sT} offen offset:16")
e("s_waitcnt vmcnt(0)")
e(f"v_cndmask_b32 v{KB+6}, v{KB+6}, 0, s[{sHM}:{sHM+1}]")
e(f"v_cndmask_b32 v{KB+7}, v{KB+7}, 0, s[{sHM}:{sHM+1}]")
e(f"v_cndmask_b32 v{Q3+6}, v{Q3+6}, 0, s[{sHM}:{sHM+1}]")
e("s_nop 1")
e(f"v_mfma_f32_32x32x16_bf16 {vr(S,16)}, {Kf(0,0)}, {Qf(3,0)}, 0")
e(f"v_mfma_f32_32x32x16_bf16 {vr(S,16)}, {Kf(0,1)}, {Qf(3,1)}, {vr(S,16)}")
e("s_nop 15")
for r in range(0,16,2):
    e(f"v_max3_f32 v{vX0}, v{S+r}, v{S+r+1}, v{vX0}")
e(f"s_add_u32 s{sT}, s{sT}, {TILE}")
e(f"s_cmp_lt_u32 s{sT}, s{sHB}")
e("s_cbranch_scc1 L_max")
e(f"v_mov_b32 v{vT3}, v{vX0}")
e("s_nop 1")
e(f"v_permlane32_swap_b32 v{vT3}, v{vX0}")
e("s_nop 1")
e(f"v_max_f32 v{vT3}, v{vT3}, v{vX0}")
cm("-max as three bf16 terms in the spare k-slots")
a,b,c = vT0,vT1,vT2
e(f"v_cvt_pk_bf16_f32 v{a}, -v{vT3}, 0")
e(f"v_lshlrev_b32 v{b}, 16, v{a}")
e(f"v_sub_f32 v{b}, -v{vT3}, v{b}")
e(f"v_cvt_pk_bf16_f32 v{a}, -v{vT3}, v{b}")
e(f"v_and_b32 v{c}, 0xffff0000, v{a}")
e(f"v_sub_f32 v{b}, v{b}, v{c}")
e(f"v_cvt_pk_bf16_f32 v{b}, v{b}, 0")
e(f"v_cndmask_b32 v{Q3+6}, v{Q3+6}, v{a}, s[{sHM}:{sHM+1}]")
e(f"v_cndmask_b32 v{Q3+7}, v{Q3+7}, v{b}, s[{sHM}:{sHM+1}]")
e("s_branch L_restart")
lab("L_skipq")
e(f"ds_write_b128 v{vXA}, {Qf(3,0)}")
e("s_branch L_wq")
lab("L_end")
e("s_endpgm")
o.append('.section .rodata,"a"')
o.append(".p2align 6")
o.append(f""".amdhsa_kernel {NAME}_kernel
  .amdhsa_next_free_vgpr {NV}
  .amdhsa_next_free_sgpr {100 if DBG else 72}
  .amdhsa_accum_offset {NV}
  .amdhsa_group_segment_fixed_size 0
  .amdhsa_kernarg_size 48
  .amdhsa_user_sgpr_count 2
  .amdhsa_user_sgpr_kernarg_segment_ptr 1
  .amdhsa_system_sgpr_workgroup_id_x 1
.end_amdhsa_kernel""")
open(out_path,"w").write("\n".join(o)+"\n")
```

```python
import math, struct, sys

NAME = "standalone__fused_io_aware_attn__prompt"
out_path = sys.argv[1]
OPT = dict(x.split("=") for x in sys.argv[2:])
DBG = OPT.get("dbg","0")=="1"
ITS = OPT.get("its","0")=="1"
PRIO = OPT.get("prio","3@53,2@39,1@49,0@51")
TPRIO = OPT.get("tprio","2@22,3@33" if OPT.get("skew","0")=="1" else "2@4,1@13,0@15,2@17,1@21,0@23,2@25,1@29,0@31,2@33,1@36")
KSL=[int(c,16) for c in OPT.get("ksl","5678")]
VSL=[int(c,16) for c in OPT.get("vsl","abcd")]
DPOS=[(int(x[0]),int(x[1],16)) for x in OPT.get("dpos","39,3e,09,0e,12,19,1e").split(",")]
KILL=OPT.get("kill","")
QD=OPT.get("qd","1")=="1"
E456=OPT.get("e456","0")=="1"
CPF=int(OPT.get("cpf","1"))
SKEW=OPT.get("skew","0")=="1"
EPK=OPT.get("epk","1")=="1"
def padd(d,a,b,pk):
    if pk: return [f"v_pk_add_f32 {vr(d,2)}, {vr(a,2)}, {vr(b,2)}"]
    return [f"v_add_f32 v{d}, v{a}, v{b}", f"v_add_f32 v{d+1}, v{a+1}, v{b+1}"]
BSL=int(OPT.get("bsl","4"))
ASYM=OPT.get("asym","1")=="1"
AS2=OPT.get("as2","0")=="1"
HQ=(int(OPT.get("hq","0e")[0]),int(OPT.get("hq","0e")[1],16))
BQ=int(OPT.get("bq","1" if AS2 else "0"))
assert not (ASYM and (E456 or not QD))
SS=OPT.get("ss","p")

TOTAL = 16*4096*56
HEAD_BYTES = 4096*56
STAGE_G = 512*56
SLOT = 2*STAGE_G
TILE = 1792
GRP = 4*TILE
CONST = 2*SLOT
QX = CONST + 8192
FLAG = QX + 16384
LDS_TOTAL = FLAG + 256

def f32bits(x): return struct.unpack("<I", struct.pack("<f", x))[0]
CSCALE = f32bits(28**-0.5 * math.log2(math.e))

o = []
def e(s): o.append("    " + s)
def lab(s): o.append(s + ":")
def cm(s): o.append("    ; " + s)
NST=[0]
ST0=68
def stamp_s(tag=None):
    if DBG and (tag is None or tag in SS):
        i=NST[0]; NST[0]+=1
        return [f"s_memtime s[{ST0+2*i}:{ST0+1+2*i}]"]
    return []
def stamp(wait=False, tag=None):
    for x in stamp_s(tag):
        e(x)
        if wait: e("s_waitcnt lgkmcnt(0)")

vLANE=1; vM=2; vH=3; vT0=4; vT1=5; vT2=6; vT3=7
vDM=8; vQA=9
vKa=10; vKb=11; vV=12
vKa0=13; vKb0=14; vV0=15
vMK=16; vMV=17; vIDX=18
vOW=19; vXA=20
vXR=21
vCW=24
vCR=27
vPF=28
Q=32; KB=64; VB=80; O=96; S=160; NV=224
def vr(b,n): return f"v[{b}:{b+n-1}]"
def Qf(t,i): return vr(Q+t*8+i*4,4)
def Kf(b,i): return vr(KB+b*8+i*4,4)
def Vf(b,t): return vr(VB+b*8+t*4,4)

sQ=12; sK=16; sD=20; sO=24
sW=28; sKQ=29; sQG=30; sHO=31; sBLK=32; sIT=33; sDG=34; sDM=35; sRS=36; sT=37; sT2=38; sLREG=39; sFB=40
sC=42; sREG=46; sTOT=47; sHM=48; sOWN=50; sOWNL=51
sK0=52

def qk(j,qt,i,sb=None):
    d=S+(qt if sb is None else sb)*16
    c = "0" if i==0 else vr(d,16)
    return f"v_mfma_f32_32x32x16_bf16 {vr(d,16)}, {Kf(j%2,i)}, {Qf(qt,i)}, {c}"
def pv(j,qt,t,sb=None):
    d=S+(qt if sb is None else sb)*16
    return f"v_smfmac_f32_32x32x32_bf16 {vr(O+qt*16,16)}, {Vf(j%2,t)}, {vr(d+8*t,8)}, v{vIDX}"
def ex(sb,r):
    x=S+sb*16+r
    return f"v_exp_f32 v{x}, v{x}"
def rdK(buf,tile):
    b=KB+buf*8; off=tile*TILE
    return [f"ds_read_b64 {vr(b,2)}, v{vKa} offset:{off}", f"ds_read_b64 {vr(b+2,2)}, v{vKa} offset:{off+8}",
            f"ds_read_b64 {vr(b+4,2)}, v{vKa} offset:{off+16}", f"ds_read_b64 {vr(b+6,2)}, v{vKb} offset:{off}"]
def rdV(buf,tile):
    return [f"ds_read_b64_tr_b16 {vr(VB+buf*8+t*4+a*2,2)}, v{vV} offset:{tile*TILE+t*896+a*224}" for t in range(2) for a in range(2)]
def dma(p):
    off=(p%4)*1024
    return f"buffer_load_dwordx4 v{vDM}, s[{sD}:{sD+3}], s{sDG} offen" + (f" offset:{off}" if off else "") + " lds"

hdr = open("cdna_kernels/%s.s.ref"%NAME).read().split("; Override")[0]
o.append(hdr.rstrip())
o.append(f"; @launch grid=(256,1,1) block=(512,1,1) lds={LDS_TOTAL}")
o.append('.amdgcn_target "amdgcn-amd-amdhsa--gfx950"')
o.append(".text")
o.append(f".globl {NAME}_kernel")
o.append(".p2align 8")
o.append(f".type {NAME}_kernel,@function")
lab(f"{NAME}_kernel")
stamp()
e(f"s_load_dwordx2 s[{sQ}:{sQ+1}], s[0:1], 0")
e(f"v_lshrrev_b32 v{vT0}, 6, v0")
e("s_load_dwordx4 s[4:7], s[0:1], 8")
e(f"v_readfirstlane_b32 s{sW}, v{vT0}")
e("s_cmp_ge_u32 s2, 256")
e("s_cbranch_scc1 L_end")
if CPF:
    cm("pull this kernel's code into L2")
    e("s_getpc_b64 s[42:43]")
    lab("L_pc")
    e(f"v_lshlrev_b32 v{vT1}, 4, v0")
    e(f"v_min_u32 v{vT1}, L_end-L_pc, v{vT1}")
    e(f"global_load_dword v{vPF}, v{vT1}, s[42:43]")
e("s_setprio 3")
if DBG: e("s_memrealtime s[96:97]")
cm("query block = 32*(wg&7) + (wg>>3) (16 blocks per head); wave w prepares and finishes query tile w")
e(f"s_and_b32 s{sBLK}, s2, 7")
e(f"s_lshl_b32 s{sBLK}, s{sBLK}, 5")
e(f"s_lshr_b32 s{sT}, s2, 3")
e(f"s_add_u32 s{sBLK}, s{sBLK}, s{sT}")
e(f"s_lshl3_add_u32 s{sOWN}, s{sBLK}, s{sW}")
e(f"s_mulk_i32 s{sOWN}, {TILE}")
e(f"v_and_b32 v{vLANE}, 63, v0")
e(f"s_mov_b32 s{sTOT}, {TOTAL}")
e(f"s_mov_b32 s{sQ+2}, s{sTOT}")
e(f"s_mov_b32 s{sQ+3}, 0x20000")
e(f"v_lshlrev_b32 v{vDM}, 4, v{vLANE}")
def lanecalc():
    e(f"v_and_b32 v{vM}, 31, v0")
    e(f"v_lshrrev_b32 v{vH}, 5, v{vLANE}")
    e(f"v_mul_u32_u24 v{vT0}, 56, v{vM}")
    e(f"v_lshl_add_u32 v{vQA}, v{vH}, 5, v{vT0}")
def ownl():
    e(f"s_lshl_b32 s{sOWNL}, s{sW}, 11")
    e(f"s_add_u32 s{sOWNL}, s{sOWNL}, {QX}")
if QD: lanecalc()
else:
    ownl(); e(f"s_mov_b32 m0, s{sOWNL}")
e(f"s_lshr_b32 s{sHO}, s{sBLK}, 4")
e(f"s_mul_i32 s{sHO}, s{sHO}, {HEAD_BYTES}")
e(f"s_and_b32 s{sKQ}, s{sW}, 3")
e(f"s_mul_i32 s{sLREG}, s{sW}, {GRP}")
e(f"s_mul_i32 s{sREG}, s{sKQ}, {GRP}")
e(f"s_add_u32 s{sREG}, s{sREG}, s{sHO}")
e(f"s_mov_b32 s{sD+2}, s{sTOT}")
e(f"s_mov_b32 s{sD+3}, s{sQ+3}")
TL=int(OPT.get("tl","0"))
TPOS=int(OPT.get("tpos","0"))
if TL:
    e(f"s_and_b32 s{sT}, s{sBLK}, 15")
    e(f"s_lshl2_add_u32 s{sT}, s{sT}, s{sKQ}")
    e(f"s_mulk_i32 s{sT}, {TL*128}")
    e(f"s_add_u32 s{sT}, s{sT}, s{sHO}")
    e(f"v_min_u32 v{vT2}, {TL-1}, v{vLANE}")
    e(f"v_lshlrev_b32 v{vT2}, 7, v{vT2}")
def touch(n):
    if TL and TPOS==n: e(f"buffer_load_dword v{vPF+1}, v{vT2}, s[{sD}:{sD+3}], s{sT} offen")
e(f"s_mov_b32 s{sFB}, 0")
e(f"s_mov_b32 s{sDG}, s{sREG}")
if QD: e(f"s_mov_b32 m0, s{sLREG}")
e(f"s_cmp_lt_u32 s{sW}, 4")
e("s_waitcnt lgkmcnt(0)")
stamp()
Q3=Q+24
def qloads():
    if QD:
        e(f"buffer_load_dwordx4 {Qf(3,0)}, v{vQA}, s[{sQ}:{sQ+3}], s{sOWN} offen")
        e(f"buffer_load_dwordx4 {Qf(3,1)}, v{vQA}, s[{sQ}:{sQ+3}], s{sOWN} offen offset:16")
    else:
        e(f"buffer_load_dwordx4 v{vDM}, s[{sQ}:{sQ+3}], s{sOWN} offen lds")
        e("s_mov_b32 exec_hi, 0xffff")
        e(f"buffer_load_dwordx4 v{vDM}, s[{sQ}:{sQ+3}], s{sOWN} offen offset:1024 lds")
        e("s_mov_b32 exec_hi, -1")
def sloads():
    e(f"s_load_dwordx16 s[{sK0}:{sK0+15}], s[4:5], s{sHO}")
    e(f"s_load_dwordx2 s[{sO}:{sO+1}], s[0:1], 24")
    if DBG: e("s_load_dwordx2 s[44:45], s[0:1], 40")
cm("waves 0-3 stream K, waves 4-7 stream V: 7 KB of every 512-key stage each")
if ASYM:
    cm("waves 0-3 (query tiles 0-3) get their Q first and start one barrier before waves 4-7")
    e(f"s_cselect_b64 s[{sD}:{sD+1}], s[4:5], s[6:7]")
    touch(0)
    e("s_cbranch_scc0 L_q1")
    qloads()
    lab("L_q1")
    touch(1)
    e(dma(0)); e(dma(1))
    e("s_setprio 2")
    sloads()
    if BQ==0:
        e("s_cbranch_scc1 L_q2")
        qloads()
        lab("L_q2")
else:
    qloads()
    e(f"s_cselect_b64 s[{sD}:{sD+1}], s[4:5], s[6:7]")
    sloads()
    e("s_setprio 2")
    if not QD: e(f"s_mov_b32 m0, s{sLREG}"); e("s_nop 0")
    e(dma(0)); e(dma(1))
lab("L_restart")
e("s_setprio 1")
e(dma(2)); e(dma(3))
e("s_setprio 0")
def bq(n):
    if ASYM and BQ==n:
        e(f"s_lshr_b32 s{sT}, s{sW}, 2")
        e(f"s_cmp_gt_u32 s{sT}, s{sFB}")
        e("s_cbranch_scc0 L_q2")
        qloads()
        lab("L_q2")
        stamp(tag="b")
stamp(tag="q")
bq(1)
if QD: ownl()
else: lanecalc()
e(f"v_mov_b64 {vr(VB,2)}, 0")
e(f"v_mov_b64 {vr(VB+2,2)}, 0")
e(f"s_and_b32 s{sQG}, s{sW}, 4")
e(f"s_mov_b32 s{sO+2}, s{sTOT}")
e(f"s_mov_b32 s{sO+3}, 0x20000")
zero=[f"v_mfma_f32_32x32x16_bf16 {vr(O+16*t,16)}, {vr(VB,4)}, {vr(VB,4)}, 0" for t in range(4)]
e(f"v_mul_u32_u24 v{vT0}, 56, v{vM}")
e(f"v_lshl_add_u32 v{vOW}, v{vH}, 3, v{vT0}")
e(f"v_add_u32 v{vOW}, s{sOWNL}, v{vOW}")
e(f"v_add_u32 v{vXA}, s{sOWNL}, v{vDM}")
e(zero[0])
bq(2)
cm("LDS read addresses")
e(f"s_mul_i32 s{sC}, s{sKQ}, {GRP}")
e(f"v_cmp_eq_u32 s[{sHM}:{sHM+1}], 1, v{vH}")
e(f"v_add_u32 v{vKa0}, s{sC}, v{vQA}")
e(f"v_add_u32 v{vT0}, 24, v{vKa0}")
e(f"v_mov_b32 v{vT1}, {CONST+8}")
e(f"v_cndmask_b32 v{vKb0}, v{vT0}, v{vT1}, s[{sHM}:{sHM+1}]")
e(f"v_xor_b32 v{vMK}, 1, v{vH}")
cm("V: (8h + r)*56 + (4g + c)*8 ; lanes with 4g+c == 7 read the constant column")
e(f"v_bfe_u32 v{vT0}, v{vLANE}, 2, 2")
e(f"v_lshl_add_u32 v{vT0}, v{vH}, 3, v{vT0}")
e(zero[1])
e(f"v_mul_u32_u24 v{vT0}, 56, v{vT0}")
e(f"v_bfe_u32 v{vT1}, v{vLANE}, 4, 1")
e(f"v_and_b32 v{vT2}, 3, v{vLANE}")
e(f"v_lshl_add_u32 v{vT1}, v{vT1}, 2, v{vT2}")
e(f"v_lshl_add_u32 v{vT0}, v{vT1}, 3, v{vT0}")
e(f"s_add_u32 s{sC}, s{sC}, {STAGE_G}")
e(f"v_cmp_eq_u32 vcc, 7, v{vT1}")
e(f"v_add_u32 v{vT0}, s{sC}, v{vT0}")
e(f"v_mul_u32_u24 v{vT2}, 448, v{vH}")
e(zero[2])
bq(3)
e(f"v_add_u32 v{vT2}, {CONST+224}, v{vT2}")
e(f"v_cndmask_b32 v{vV0}, v{vT0}, v{vT2}, vcc")
e(f"v_cndmask_b32 v{vMV}, 1, 0, vcc")
e(f"v_mov_b32 v{vKa}, v{vKa0}")
e(f"v_mov_b32 v{vKb}, v{vKb0}")
e(f"v_mov_b32 v{vV}, v{vV0}")
e(f"v_mov_b32 v{vIDX}, 0xdddddddd")
e(f"s_mov_b32 s{sRS}, 0")
e(zero[3])
cm("constant region {1,0,0,0 | 1,1,1,0} and the flag word")
e(f"v_lshlrev_b32 v{vT0}, 4, v0")
e(f"v_add_u32 v{vT0}, {CONST}, v{vT0}")
e(f"v_mov_b32 v{S}, 0x3f80")
e(f"v_mov_b32 v{S+1}, 0")
e(f"v_mov_b32 v{S+2}, 0x3f803f80")
e(f"v_mov_b32 v{S+3}, v{S}")
e(f"ds_write_b128 v{vT0}, {vr(S,4)}")
e(f"v_mov_b32 v{vT1}, {FLAG}")
e(f"ds_write_b32 v{vT1}, v{S+1}")
bq(4)
cm("local query tile t is tile (w&4) + ((w+1+t)&3); local tile 3 is this wave's own")
for t in range(3):
    e(f"s_add_u32 s{sC}, s{sW}, {t+1}")
    e(f"s_and_b32 s{sC}, s{sC}, 3")
    e(f"s_add_u32 s{sC}, s{sC}, s{sQG}")
    e(f"s_lshl_b32 s{sC+1}, s{sC}, 11")
    e(f"s_add_u32 s{sC+1}, s{sC+1}, {QX}")
    e(f"v_add_u32 v{vXR+t}, s{sC+1}, v{vDM}")
    e(f"s_mulk_i32 s{sC}, 12288")
    if t: e(f"s_addk_i32 s{sC}, {t*4096}")
    e(f"v_add_u32 v{vCW+t}, s{sC}, v{vDM}")
e(f"s_mul_i32 s{sC}, s{sW}, 12288")
e(f"v_add_u32 v{vCR}, s{sC}, v{vDM}")
e(f"s_mov_b32 s{sC}, 0x{CSCALE:08x}")
e(f"s_mov_b32 s{sC+1}, s{sC}")
e("s_mov_b64 vcc, -1")
e(f"s_mov_b32 s{sIT}, 0")
e(f"s_add_u32 m0, s{sLREG}, 4096")
e(f"s_add_u32 s{sDG}, s{sREG}, 4096")
e(f"s_cmp_lg_u32 s{sFB}, 0")
e("s_cbranch_scc1 L_skipq")
if not QD: e(f"v_add_u32 v{vT3}, s{sOWNL}, v{vQA}")
cm("key row 0 in fragment order")
stamp(tag="q")
e("s_waitcnt lgkmcnt(0)")
for r in range(0,8,2): e(f"v_mov_b64 {vr(KB+r,2)}, s[{sK0+r}:{sK0+r+1}]")
e(f"s_mov_b32 exec_lo, 0")
for r in range(0,6,2): e(f"v_mov_b64 {vr(KB+r,2)}, s[{sK0+8+r}:{sK0+9+r}]")
e(f"s_mov_b32 exec_lo, -1")
if ASYM:
    e(f"s_cmp_lt_u32 s{sW}, 4")
    e("s_cbranch_scc1 L_a0")
    e("s_waitcnt vmcnt(4)")
    e("s_setprio 3")
    e("s_barrier")
    if AS2:
        e("s_waitcnt vmcnt(2)")
        if OPT.get("b456","1")=="0": e(dma(4)); e(dma(5)); e(dma(6))
        e("s_barrier")
        if OPT.get("b456","1")=="1": e(dma(4)); e(dma(5)); e(dma(6))
        e("s_waitcnt vmcnt(3)")
    else:
        e(f"s_waitcnt vmcnt({2 if BQ==0 else 0})")
    lab("L_a0")
e(f"s_waitcnt vmcnt({5 if (TL and TPOS==1) else 4})")
stamp()
if not QD:
    for i in (2,3,0,1): e(f"ds_read_b64 {vr(Q3+2*i,2)}, v{vT3} offset:{8*i}")
if E456: e(dma(4)); e(dma(5)); e(dma(6))
cm("scale own Q tile by log2(e)/sqrt(28), round to bf16; shift of each row = its score against key 0")
SH=S+32
for n,i in enumerate((2,3,0,1)):
    if not QD: e(f"s_waitcnt lgkmcnt({0 if DBG else 3-n})")
    if i==3:
        e(f"v_cndmask_b32 v{Q3+6}, v{Q3+6}, 0, s[{sHM}:{sHM+1}]")
        e(f"v_cndmask_b32 v{Q3+7}, v{Q3+7}, 0, s[{sHM}:{sHM+1}]")
    for r in (2*i,2*i+1):
        x=Q3+r; t=S+8+2*r
        e(f"v_lshlrev_b32 v{t}, 16, v{x}")
        e(f"v_and_b32 v{t+1}, 0xffff0000, v{x}")
    if i==0: e(f"v_mfma_f32_32x32x16_bf16 {vr(SH,16)}, {Kf(0,1)}, {Qf(3,1)}, 0")
    for r in (2*i,2*i+1):
        t=S+8+2*r
        e(f"v_mul_f32 v{t}, s{sC}, v{t}")
        e(f"v_mul_f32 v{t+1}, s{sC}, v{t+1}")
    for r in (2*i,2*i+1):
        t=S+8+2*r
        e(f"v_cvt_pk_bf16_f32 v{Q3+r}, v{t}, v{t+1}")
e("s_nop 1")
e(f"v_mfma_f32_32x32x16_bf16 {vr(SH,16)}, {Kf(0,0)}, {Qf(3,0)}, {vr(SH,16)}")
e(f"ds_write_b128 v{vXA}, {Qf(3,0)}")
e("s_nop 10")
e(f"v_cvt_pk_bf16_f32 v{vT0}, -v{SH}, 0")
e(f"v_cndmask_b32 v{Q3+6}, v{Q3+6}, v{vT0}, s[{sHM}:{sHM+1}]")
lab("L_wq")
e(f"ds_write_b128 v{vXA}, {Qf(3,1)} offset:1024")
if ASYM and BQ==0:
    e("s_cbranch_scc1 L_a1")
    e("s_waitcnt vmcnt(0)")
    lab("L_a1")
if AS2:
    e("s_cbranch_scc0 L_a1")
    e("s_waitcnt vmcnt(2)")
    lab("L_a1")
    e("s_waitcnt lgkmcnt(0)")
else:
    e(f"s_waitcnt vmcnt({5 if E456 else 2}) lgkmcnt(0)")
stamp()
e("s_barrier")
stamp(True)
rk=rdK(0,0)
e(f"ds_read_b128 {Qf(0,0)}, v{vXR}")
e(rk[0]); e(rk[1])
e(f"ds_read_b128 {Qf(0,1)}, v{vXR} offset:1024")
e(rk[2]); e(rk[3])
def nextstage():
    e(f"s_add_u32 s{sDG}, s{sREG}, {STAGE_G}")
    e(f"s_add_u32 s{sDM}, s{sLREG}, {SLOT}")
    e(f"s_mov_b32 m0, s{sDM}")
if E456: nextstage()
elif not AS2: e(dma(4))
e(f"ds_read_b128 {Qf(1,0)}, v{vXR+1}")
e(f"ds_read_b128 {Qf(1,1)}, v{vXR+1} offset:1024")
if AS2:
    e("s_cbranch_scc0 L_a2")
    e(dma(4)); e(dma(5)); e(dma(6))
    lab("L_a2")
e("s_waitcnt lgkmcnt(5)")
e(qk(0,0,0))
e(f"ds_read_b128 {Qf(2,0)}, v{vXR+2}")
rv=rdV(0,0)
e(rv[0]); e(rv[1])
e("s_waitcnt lgkmcnt(5)")
e(qk(0,0,1))
e(f"ds_read_b128 {Qf(2,1)}, v{vXR+2} offset:1024")
e(rv[2]); e(rv[3])
if not AS2: e(dma(0) if E456 else dma(5))
e("s_waitcnt lgkmcnt(6)")
e(qk(0,1,0))
if not AS2: e(dma(1) if E456 else dma(6))
if not E456: nextstage()
else: e("s_nop 2")
e(qk(0,1,1))
if ITS:
    e("s_mov_b64 s[62:63], 1")
    e("v_mov_b32 v31, 0")
e(("s_nop 2" if AS2 else "s_nop 1") if ASYM else "s_setprio 3")
e("s_nop 0")
stamp(True)

def parse_prio(s):
    d={}
    for it in s.split(","):
        if it:
            l,p=it.split("@"); d[int(p)]=int(l)
    return d
prio_at=parse_prio(PRIO)
def mfmas(j):
    mf=[]
    for qt in range(4):
        prev = (j,qt-1) if qt>0 else (j-1,3)
        nx = (j,qt+2) if qt<2 else (j+1,qt-2)
        mf+=[pv(prev[0],prev[1],1), qk(nx[0],nx[1],0), pv(j,qt,0), qk(nx[0],nx[1],1)]
    return mf
exps=[ex(qt,r) for qt in range(4) for r in range(16)]
body=[]
ndma_before=lambda tile,slot: sum(1 for (t,s_) in DPOS[2:] if (t,s_)<(tile,slot))
for jj in range(4):
    j=jj+4
    mf=mfmas(j)
    sc=[[] for _ in range(16)]; mem=[[] for _ in range(16)]; va=[[] for _ in range(16)]
    free=lambda sl: (2 if sl%2==0 else 1)-len([x for x in sc[sl] if not x.endswith(":")])
    def put(lo,hi,x):
        for sl in range(lo,hi+1):
            if free(sl)>0: sc[sl].append(x); return sl
        sc[hi].append(x); return hi
    for x,sl in zip(rdK((j+1)%2,(jj+1)%4),KSL): mem[sl].append(x)
    for x,sl in zip(rdV((j+1)%2,(jj+1)%4),VSL): mem[sl].append(x)
    sc[0].append("s_waitcnt lgkmcnt(0)")
    allr=sorted([(x,0,i) for i,x in enumerate(KSL)]+[(x,1,i) for i,x in enumerate(VSL)])
    def after(idx,at):
        pos=allr.index((KSL[idx],0,idx))
        return sum(1 for r in allr[pos+1:] if r[0]<at)
    assert KSL[1]<8 and KSL[3]<10 and VSL[0]>=8
    sc[8].append(f"s_waitcnt lgkmcnt({after(1,8)})")
    sc[10].append(f"s_waitcnt lgkmcnt({after(3,10)})")
    if jj==0 or (jj==1 and not E456):
        sc[BSL]+= [f"s_cbranch_vccnz L_first{jj}", f"L_first{jj}_ret:"]
    if AS2 and jj==HQ[0]:
        sc[HQ[1]]+= ["s_cbranch_vccnz L_firstq", "L_firstq_ret:"]
    if jj==1:
        sc[7].append(f"s_cmp_eq_u32 s{sIT}, 7")
        sc[8].append("s_cbranch_scc1 L_tail")
    if jj==3:
        sc[BSL]+= ["s_waitcnt vmcnt(0)", "s_barrier"]
    for sl in range(16):
        if jj*16+sl in prio_at: sc[sl].append(f"s_setprio {prio_at[jj*16+sl]}")
    for p,(t,sl) in enumerate(DPOS):
        if t==jj: mem[sl]=[dma(p)]+mem[sl]
    for p,(t,sl) in enumerate(DPOS):
        if t==jj and p==4:
            prevsl = DPOS[p-1][1]+1 if DPOS[p-1][0]==jj else 0
            q_=put(prevsl,sl-1,f"s_add_u32 m0, s{sDM}, 4096"); put(q_,sl-1,f"s_add_u32 s{sDG}, s{sDG}, 4096")
    if jj==2:
        p=put(1,15,f"s_xor_b32 s{sRS}, s{sRS}, {SLOT}")
        p=put(p,15,f"s_add_u32 s{sDG}, s{sDG}, {STAGE_G-4096}")
        p=put(p,15,f"s_sub_u32 s{sDM}, s{sLREG}, s{sRS}")
        p=put(p,15,f"s_add_u32 s{sDM}, s{sDM}, {SLOT}")
        p=put(p,15,f"s_add_u32 s{sIT}, s{sIT}, 1")
        p=put(p,15,f"s_cmp_lt_u32 s{sIT}, 7")
        p=put(p,15,f"s_cselect_b32 s{sD+2}, s{sTOT}, 0")
        p=put(p,15,f"s_cselect_b32 s{sDM}, s{sDM}, {QX}")
        p=put(p,15,f"s_mov_b32 m0, s{sDM}")
        va[KSL[3]+2].append(f"v_add_u32 v{vKa}, s{sRS}, v{vKa0}"); va[KSL[3]+4].append(f"v_mad_u32_u24 v{vKb}, v{vMK}, s{sRS}, v{vKb0}")
    if jj==3:
        va[1].append(f"v_mad_u32_u24 v{vV}, v{vMV}, s{sRS}, v{vV0}")
    if ITS:
        sc[5].append("s_memtime s[60:61]")
        va[13]+= ["v_mov_b32 v30, s60", "v_cndmask_b32 v31, v31, v30, s[62:63]"]
        sc[15].append("s_lshl_b64 s[62:63], s[62:63], 1")
    seq=[f";---- key tile {jj}"]+exps[0:2]
    for sl in range(16):
        seq+=[mf[sl]]+sc[sl]+mem[sl]+exps[2+4*sl:6+4*sl]+va[sl]
    body+=seq
head=body[:4]; body=body[4:]+head+["s_branch L_loop"]
for s_ in head[1:3]: e(s_)
if "d" in KILL: body=[x for x in body if not x.startswith("buffer_load")]
if "b" in KILL: body=[x for x in body if not x.startswith("s_barrier")]
if "l" in KILL: body=[x for x in body if not x.startswith("ds_read")]
if OPT.get("align","3")!="0": o.append(f".p2align {OPT.get('align','3')}")
lab("L_loop")
for s_ in body:
    if s_.endswith(":"): lab(s_[:-1])
    else: e(s_)
lab("L_first0")
cm("first pass only: more of stage 0 must have landed")
assert ndma_before(0,BSL)==0
stamp(tag="f")
if AS2:
    e(f"s_cmp_lt_u32 s{sW}, 4")
    e("s_cbranch_scc1 L_f0a")
    e("s_waitcnt vmcnt(0)")
    e("s_mov_b64 vcc, 0")
    lab("L_f0a")
if ASYM and not AS2:
    e(dma(0)); e(dma(1))
    e(f"s_cmp_lt_u32 s{sW}, 4")
    e("s_cbranch_scc0 L_first0_ret")
    e("s_waitcnt vmcnt(5)")
    e("s_barrier")
    stamp(tag="f")
else:
    e(f"s_waitcnt vmcnt({2 if E456 else 3})")
    e("s_barrier")
    stamp(tag="f")
    if E456: e("s_mov_b64 vcc, 0")
    else: e(dma(0)); e(dma(1))
e("s_branch L_first0_ret")
if AS2:
    lab("L_firstq")
    stamp(tag="f")
    e("s_barrier")
    stamp(tag="f")
    e("s_branch L_firstq_ret")
if not E456:
    lab("L_first1")
    stamp(tag="f")
    e(f"s_waitcnt vmcnt({2+ndma_before(1,BSL)})")
    e(f"s_setprio {OPT.get('p1','3')}")
    e("s_barrier")
    stamp(tag="f")
    e("s_mov_b64 vcc, 0")
    e("s_branch L_first1_ret")

lab("L_tail")
cm("---- last two and a half key tiles, ordered so that query tiles finish one after another")
tp=parse_prio(TPRIO)
U={-2:(61,2),-1:(61,3)}
for u in range(8): U[u]=(62+(u&1),u>>1)
NS=40
tmf=[None]*NS; need=[[] for _ in range(NS+1)]
for u in range(-2,8):
    b=4*(u+2)
    if u-1 in U:
        j_,q_=U[u-1]; tmf[b]=pv(j_,q_,1,(u-1)%4); need[b]=[f"V{j_}.2",f"V{j_}.3"]
    j_,q_=U[u]; tmf[b+2]=pv(j_,q_,0,u%4); need[b+2]=[f"V{j_}.0",f"V{j_}.1"]
    if u+2 in U:
        j_,q_=U[u+2]
        tmf[b+1]=qk(j_,q_,0,(u+2)%4); need[b+1]=[f"K{j_}.0",f"K{j_}.1"]
        tmf[b+3]=qk(j_,q_,1,(u+2)%4); need[b+3]=[f"K{j_}.2",f"K{j_}.3"]
texp=[ex(u%4,r) for u in range(-2,8) for r in range(16)]
tmem=[[] for _ in range(NS)]; tsc=[[] for _ in range(NS)]; tend=[[] for _ in range(NS)]
issued=[f"K62.{i}" for i in range(4) if KSL[i]<8]
done=set(["K62.0","K62.1"]+[f"V61.{i}" for i in range(4)])
k62=rdK(0,2); k63=rdK(1,3); v62=rdV(0,2); v63=rdV(1,3)
for i in range(4):
    if KSL[i]>=8: tmem[0].append((f"K62.{i}",k62[i]))
for i,sl in enumerate((0,1,2,3)): tmem[sl].append((f"K63.{i}",k63[i]))
for i,sl in enumerate((4,5,6,7)): tmem[sl].append((f"V62.{i}",v62[i]))
for i,sl in enumerate((8,9,10,11)): tmem[sl].append((f"V63.{i}",v63[i]))
W=lambda t,i: f"ds_write_b128 v{vCW+t}, {vr(O+16*t+4*i,4)} offset:{i*1024}"
WS=[[int(x) for x in g.split(".")] for g in OPT.get("ws","19.20.21.22,27.28.29.30,35.36.37.38").split(",")]
for t in range(3):
    for i in range(4): tmem[WS[t][i]].append((f"W{t}.{i}",W(t,i)))
T0=16; T1=int(OPT.get("t1","32")); TX=int(OPT.get("tx","24"))
R=lambda i,dst: f"ds_read_b128 {vr(dst,4)}, v{vCR} offset:{i*1024}"
RS_=[int(x) for x in OPT.get("rs","25.25.26.26.33.33.34.34").split(".")]
assert all(x>=T1 for x in RS_[4:]) and all(x>=(TX if TX>0 else T1) for x in RS_[:4]) and max(WS[1])<T1 and (TX<0 or max(WS[0])<TX) and not (SKEW and TX>0)
for i in range(8): tmem[RS_[i]].append((f"R{i}",R(i,O+4*i)))
seq=[]
for sl in range(NS):
    if sl>0 and tmf[sl]: seq.append(tmf[sl])
    scal=[]
    if sl==T0:
        assert all(x in done for x in issued)
        if SKEW: scal+=["s_cbranch_scc1 L_t0skip","s_waitcnt vmcnt(0)","s_barrier","L_t0skip:"]
        else: scal+=["s_waitcnt vmcnt(0)","s_barrier"]
    elif sl==T0-2 and SKEW:
        scal+=[f"s_cmp_lt_u32 s{sW}, 4"]
    elif sl==T1 or sl==TX:
        scal+=["s_waitcnt vmcnt(0) lgkmcnt(0)","s_barrier"]; done|=set(issued)
    nxt=[x for x in need[sl+1] if x not in done]
    if nxt:
        assert all(x in issued for x in nxt),(sl,nxt)
        last=max(issued.index(x) for x in nxt)
        scal.append(f"s_waitcnt lgkmcnt({len(issued)-1-last})")
        done|=set(issued[:last+1])
    if sl in tp: scal.append(f"s_setprio {tp[sl]}")
    if sl in (0,T0,T1): scal+=stamp_s("t")
    seq+=scal
    for nm,x in tmem[sl]: seq.append(x); issued.append(nm)
    seq+=texp[2+4*sl:6+4*sl]
lastR=max(issued.index(f"R{i}") for i in range(8))
seq.append(f"s_waitcnt lgkmcnt({len(issued)-1-lastR})")
pa=sum([padd(O+r,O+r,O+16+r,False) for r in range(0,16,2)],[])
seq+=pa[:1]+[pv(63,3,1,3)]+pa[1:]
for s_ in seq:
    if s_.endswith(":"): lab(s_[:-1])
    else: e(s_)
stamp()
e("s_waitcnt lgkmcnt(0)")
e("s_barrier")
stamp(True,tag="p")
O3=O+48
for i in (3,0,1,2): e(R(8+i,S+4*i))
for r in (12,14,0,2,4,6,8,10):
    for x in padd(O3+r,O3+r,O+r,EPK): e(x)
def add4(i):
    r=4*i
    return padd(O3+r,O3+r,S+r,EPK)+padd(O3+r+2,O3+r+2,S+r+2,EPK)
e("s_waitcnt lgkmcnt(3)")
for x in add4(3): e(x)
e(f"v_mov_b32 v{vT0}, v{O3+12}")
e(f"v_mov_b32 v{vT2}, v{O3+12}")
e("s_waitcnt lgkmcnt(2)")
a=add4(0); e(a[0])
e(f"v_permlane32_swap_b32 v{vT0}, v{vT2}")
for x in a[1:]: e(x)
e("s_waitcnt lgkmcnt(0)")
e(f"v_rcp_f32 v{vT0}, v{vT2}")
for x in add4(1)+add4(2): e(x)
P=S+16
for i in (3,0,1,2):
    if EPK:
        for r in (4*i,4*i+2): e(f"v_pk_mul_f32 {vr(S+r,2)}, {vr(O3+r,2)}, {vr(vT0,2)} op_sel_hi:[1,0]")
    else:
        for r in range(4*i,4*i+4): e(f"v_mul_f32 v{S+r}, v{O3+r}, v{vT0}")
    for r in (2*i,2*i+1): e(f"v_cvt_pk_bf16_f32 v{P+r}, v{S+2*r}, v{S+2*r+1}")
    e(f"ds_write_b64 v{vOW}, {vr(P+2*i,2)} offset:{16*i}")
e(f"ds_read_b128 {vr(P+8,4)}, v{vXA}")
e(f"ds_read_b128 {vr(P+12,4)}, v{vXA} offset:1024")
e("s_waitcnt lgkmcnt(1)")
e(f"buffer_store_dwordx4 {vr(P+8,4)}, v{vDM}, s[{sO}:{sO+3}], s{sOWN} offen")
e("s_mov_b32 exec_hi, 0xffff")
e("s_waitcnt lgkmcnt(0)")
e(f"buffer_store_dwordx4 {vr(P+12,4)}, v{vDM}, s[{sO}:{sO+3}], s{sOWN} offen offset:1024")
e("s_mov_b32 exec_hi, -1")
stamp(tag="p")
e(f"s_cmp_lg_u32 s{sFB}, 0")
e("s_cbranch_scc1 L_end")
if SKEW:
    cm("waves 0-3 run one barrier ahead of waves 4-7 through the tail")
    e(f"s_cmp_lt_u32 s{sW}, 4")
    e("s_cbranch_scc0 L_noextra")
    e("s_setprio 0")
    e("s_barrier")
    lab("L_noextra")
cm("range check of the shifted sums: 2^-30 < l < 2^100 and every accumulator finite, else redo with true maxima")
e(f"v_mov_b32 v{vT3}, 0")
e(f"v_mov_b32 v{vT1}, v{vT2}")
for r in range(0,16,2): e(f"v_pk_fma_f32 {vr(vT2,2)}, {vr(O3+r,2)}, 0, {vr(vT2,2)}")
e(f"v_add_f32 v{vT3}, v{vT2}, v{vT3}")
e(f"v_mov_b32 v{vT0}, 0x{f32bits(2.0**100):08x}")
e(f"v_cmp_nlt_f32 vcc, v{vT3}, v{vT0}")
e(f"v_mov_b32 v{vT0}, 0x{f32bits(2.0**-30):08x}")
e(f"v_cmp_ngt_f32 s[{sC}:{sC+1}], v{vT1}, v{vT0}")
e(f"v_mov_b32 v{vT1}, {FLAG}")
e(f"v_mov_b32 v{vT2}, 1")
e(f"s_or_b64 vcc, vcc, s[{sC}:{sC+1}]")
e("s_cbranch_scc0 L_noflag")
e(f"ds_write_b32 v{vT1}, v{vT2}")
lab("L_noflag")
e("s_waitcnt lgkmcnt(0)")
e("s_barrier")
e(f"ds_read_b32 v{vT2}, v{vT1}")
e("s_waitcnt lgkmcnt(0)")
e(f"v_readfirstlane_b32 s{sT}, v{vT2}")
e("s_nop 3")
if DBG:
    e("s_waitcnt vmcnt(0)")
    stamp()
    e("s_memrealtime s[98:99]")
    e("s_waitcnt lgkmcnt(0)")
    e("s_lshl_b32 s52, s2, 3")
    e(f"s_add_u32 s52, s52, s{sW}")
    e(f"s_lshl_b32 s52, s52, 6")
    e(f"v_mov_b32 v{vT0}, s52")
    for i in range(1,NST[0]):
        e(f"s_sub_u32 s53, s{ST0+2*i}, s{ST0}")
        e(f"v_mov_b32 v{vT1}, s53")
        e(f"global_store_dword v{vT0}, v{vT1}, s[44:45] offset:{4*(i-1)}")
    if ITS:
        e(f"v_subrev_u32 v31, s{ST0}, v31")
        e(f"s_lshl_b32 s52, s52, 2")
        e(f"s_add_u32 s52, s52, 0x40000")
        e(f"v_lshl_add_u32 v30, v{vLANE}, 2, s52")
        e(f"global_store_dword v30, v31, s[44:45]")
    e(f"v_mov_b32 v{vT1}, s96")
    e(f"global_store_dword v{vT0}, v{vT1}, s[44:45] offset:56")
    e(f"v_mov_b32 v{vT1}, s98")
    e(f"global_store_dword v{vT0}, v{vT1}, s[44:45] offset:60")
e(f"s_cmp_lg_u32 s{sT}, 0")
e("s_cbranch_scc1 L_fallback")
lab("L_end")
e("s_endpgm")
lab("L_fallback")
cm("---- fallback: exact row maxima over all keys, then redo the block with them")
e("s_waitcnt vmcnt(0)")
e("s_barrier")
e(f"s_mov_b32 s{sFB}, 1")
e(f"s_mov_b32 s{sD+2}, s{sTOT}")
e(f"s_mov_b64 s[{sK}:{sK+1}], s[4:5]")
e(f"s_mov_b32 s{sK+2}, s{sTOT}")
e(f"s_mov_b32 s{sK+3}, 0x20000")
e(f"s_mov_b32 s{sT}, s{sHO}")
e(f"s_add_u32 s{sT2}, s{sHO}, {HEAD_BYTES}")
vX0=S+32
e(f"v_mov_b32 v{vX0}, 0xff800000")
lab("L_max")
e(f"buffer_load_dwordx4 {Kf(0,0)}, v{vQA}, s[{sK}:{sK+3}], s{sT} offen")
e(f"buffer_load_dwordx4 {Kf(0,1)}, v{vQA}, s[{sK}:{sK+3}], s{sT} offen offset:16")
e("s_waitcnt vmcnt(0)")
e(f"v_cndmask_b32 v{KB+6}, v{KB+6}, 0, s[{sHM}:{sHM+1}]")
e(f"v_cndmask_b32 v{KB+7}, v{KB+7}, 0, s[{sHM}:{sHM+1}]")
e(f"v_cndmask_b32 v{Q3+6}, v{Q3+6}, 0, s[{sHM}:{sHM+1}]")
e("s_nop 1")
e(f"v_mfma_f32_32x32x16_bf16 {vr(S,16)}, {Kf(0,0)}, {Qf(3,0)}, 0")
e(f"v_mfma_f32_32x32x16_bf16 {vr(S,16)}, {Kf(0,1)}, {Qf(3,1)}, {vr(S,16)}")
e("s_nop 15")
for r in range(0,16,2):
    e(f"v_max3_f32 v{vX0}, v{S+r}, v{S+r+1}, v{vX0}")
e(f"s_add_u32 s{sT}, s{sT}, {TILE}")
e(f"s_cmp_lt_u32 s{sT}, s{sT2}")
e("s_cbranch_scc1 L_max")
e(f"v_mov_b32 v{vT3}, v{vX0}")
e("s_nop 1")
e(f"v_permlane32_swap_b32 v{vT3}, v{vX0}")
e("s_nop 1")
e(f"v_max_f32 v{vT3}, v{vT3}, v{vX0}")
cm("-max as three bf16 terms in the spare k-slots")
a,b,c = vT0,vT1,vT2
e(f"v_cvt_pk_bf16_f32 v{a}, -v{vT3}, 0")
e(f"v_lshlrev_b32 v{b}, 16, v{a}")
e(f"v_sub_f32 v{b}, -v{vT3}, v{b}")
e(f"v_cvt_pk_bf16_f32 v{a}, -v{vT3}, v{b}")
e(f"v_and_b32 v{c}, 0xffff0000, v{a}")
e(f"v_sub_f32 v{b}, v{b}, v{c}")
e(f"v_cvt_pk_bf16_f32 v{b}, v{b}, 0")
e(f"v_cndmask_b32 v{Q3+6}, v{Q3+6}, v{a}, s[{sHM}:{sHM+1}]")
e(f"v_cndmask_b32 v{Q3+7}, v{Q3+7}, v{b}, s[{sHM}:{sHM+1}]")
e(f"s_mov_b32 m0, s{sLREG}")
e(f"s_mov_b32 s{sDG}, s{sREG}")
e(dma(0)); e(dma(1))
e("s_branch L_restart")
lab("L_skipq")
if ASYM:
    e("s_waitcnt vmcnt(0) lgkmcnt(0)")
    e(f"s_cmp_lt_u32 s{sW}, 4")
    e("s_cbranch_scc1 L_sk1")
    e("s_barrier")
    if AS2:
        e("s_barrier")
        e(dma(4)); e(dma(5)); e(dma(6))
    lab("L_sk1")
if E456: e(dma(4)); e(dma(5)); e(dma(6))
e(f"ds_write_b128 v{vXA}, {Qf(3,0)}")
e("s_branch L_wq")
o.append('.section .rodata,"a"')
o.append(".p2align 6")
o.append(f""".amdhsa_kernel {NAME}_kernel
  .amdhsa_next_free_vgpr {NV}
  .amdhsa_next_free_sgpr {100 if DBG else 72}
  .amdhsa_accum_offset {NV}
  .amdhsa_group_segment_fixed_size 0
  .amdhsa_kernarg_size 48
  .amdhsa_user_sgpr_count 2
  .amdhsa_user_sgpr_kernarg_segment_ptr 1
  .amdhsa_system_sgpr_workgroup_id_x 1
.end_amdhsa_kernel""")
open(out_path,"w").write("\n".join(o)+"\n")
```

```python
import sys
s=open(sys.argv[1]).read(); wa,wb,role=sys.argv[3:6]
P2="    buffer_load_dwordx4 v8, s[20:23], s34 offen offset:2048 lds\n"; P3="    buffer_load_dwordx4 v8, s[20:23], s34 offen offset:3072 lds\n"
anch={"st":("    v_lshrrev_b32 v4, 6, v0\n",0),"karg":("    ; waves 0-3 stream K",0),"rst":("L_restart:\n",1),"bp2":(P2,0),"ap3":(P3,1),"setup":("    ; key row 0",0),"kw":("    v_mov_b64 v[24:25], s[52:53]\n",0),
      "q":("    ; own Q tile",0),"rdy":("    s_waitcnt vmcnt(2) lgkmcnt(0)\n",1),"bar":("    ds_read_b128 v[32:35], v16\n",0),"h0":("L_first0:\n",1),"f1":("    s_branch L_first1_ret\n",0)}
s=s.replace("_kernel:\n","_kernel:\n    s_memrealtime s[80:81]\n",1)
for w,r in ((wa,86),(wb,88)):
    st=f"    s_memrealtime s[{r}:{r+1}]\n"; a,after=anch[w]; assert a in s
    s=s.replace(a,(a+st) if after else (st+a),1)
if role.startswith("w"): sel=f"    s_and_b32 s90, s2, 0xff\n    s_cmp_eq_u32 s90, {int(role[1:])}\n"
elif role[0] in "ab" and len(role)>1: sel=f"    s_and_b32 s90, s2, 0xff\n    s_lshr_b32 s91, s28, 2\n    s_lshl_b32 s91, s91, 8\n    s_or_b32 s90, s90, s91\n    s_cmp_eq_u32 s90, {int(role[1:])+(256 if role[0]=='b' else 0)}\n"
elif role.startswith("x"): sel=f"    s_and_b32 s90, s2, 7\n    s_cmp_eq_u32 s90, {int(role[1:])}\n"
else: sel={"A":"    s_cmp_lt_u32 s28, 4\n","B":"    s_cmp_ge_u32 s28, 4\n"}[role]
s=s.replace("    s_cmp_lg_u32 s37, 0\n    s_cbranch_scc1 L_fallback\n","""    s_waitcnt vmcnt(0)
    s_sub_u32 s85, s88, s86
    s_lshl_b32 s85, s85, 3
"""+sel+"""    s_cselect_b32 s85, s85, 0
    s_add_u32 s85, s85, 5000
L_spin:
    s_memrealtime s[82:83]
    s_waitcnt lgkmcnt(0)
    s_sub_u32 s84, s82, s80
    s_cmp_lt_u32 s84, s85
    s_cbranch_scc1 L_spin
    s_cmp_lg_u32 s37, 0
    s_cbranch_scc1 L_fallback
""")
s=s.replace(".amdhsa_next_free_sgpr 72",".amdhsa_next_free_sgpr 92")
open(sys.argv[2],"w").write(s)
```

```python
import sys
s=open(sys.argv[1]).read(); wa,wb,role=sys.argv[3:6]
P2="    buffer_load_dwordx4 v8, s[20:23], s34 offen offset:2048 lds\n"; P3="    buffer_load_dwordx4 v8, s[20:23], s34 offen offset:3072 lds\n"
anch={"st":("    v_lshrrev_b32 v4, 6, v0\n",0),"karg":("    ; waves 0-3 stream K",0),"rst":("L_restart:\n",1),"bp2":(P2,0),"ap3":(P3,1),"setup":("    ; key row 0",0),"kw":("    v_mov_b64 v[24:25], s[52:53]\n",0),
      "q":("    ; own Q tile",0),"rdy":("    s_waitcnt vmcnt(2) lgkmcnt(0)\n",1),"bar":("    ds_read_b128 v[32:35], v16\n",0),"h0":("L_first0:\n",1),"f1":("    s_branch L_first1_ret\n",0),"tail":("L_tail:\n",1),"norm":("    ; ---- normalise",0),"stored":("    ; safety check of the shift",0)}
s=s.replace("_kernel:\n","_kernel:\n    s_memrealtime s[80:81]\n",1)
CY=int(sys.argv[6]) if len(sys.argv)>6 else None
for w,r in ((wa,86),(wb,88)):
    st=f"    s_mem{'real' if CY is None else ''}time s[{r}:{r+1}]\n"; a,after=anch[w]; assert a in s
    s=s.replace(a,(a+st) if after else (st+a),1)
if role.startswith("w"): sel=f"    s_and_b32 s90, s2, 0xff\n    s_cmp_eq_u32 s90, {int(role[1:])}\n"
elif role[0] in "ab" and len(role)>1: sel=f"    s_and_b32 s90, s2, 0xff\n    s_lshr_b32 s91, s28, 2\n    s_lshl_b32 s91, s91, 8\n    s_or_b32 s90, s90, s91\n    s_cmp_eq_u32 s90, {int(role[1:])+(256 if role[0]=='b' else 0)}\n"
elif role.startswith("x"): sel=f"    s_and_b32 s90, s2, 7\n    s_cmp_eq_u32 s90, {int(role[1:])}\n"
else: sel={"A":"    s_cmp_lt_u32 s28, 4\n","B":"    s_cmp_ge_u32 s28, 4\n"}[role]
s=s.replace("    s_cmp_lg_u32 s37, 0\n    s_cbranch_scc1 L_fallback\n","""    s_waitcnt vmcnt(0)
    s_sub_u32 s85, s88, s86
"""+("    s_lshl_b32 s85, s85, 3\n" if CY is None else f"    s_sub_u32 s85, s85, {CY}\n")+sel+"""    s_cselect_b32 s85, s85, 0
    s_add_u32 s85, s85, 5000
L_spin:
    s_memrealtime s[82:83]
    s_waitcnt lgkmcnt(0)
    s_sub_u32 s84, s82, s80
    s_cmp_lt_u32 s84, s85
    s_cbranch_scc1 L_spin
    s_cmp_lg_u32 s37, 0
    s_cbranch_scc1 L_fallback
""")
s=s.replace(".amdhsa_next_free_sgpr 72",".amdhsa_next_free_sgpr 92")
open(sys.argv[2],"w").write(s)
```
